```python
import torch

def _softmax(x, axis=-1):
    return torch.softmax(x, dim=axis)
def _gelu(x):
    return torch.nn.functional.gelu(x, approximate="tanh")
def _silu(x):
    return torch.nn.functional.silu(x)
def _sigmoid(x):
    return torch.sigmoid(x)
def _layernorm(x, axis=-1, eps=1e-5):
    m = x.mean(dim=axis, keepdim=True)
    v = x.var(dim=axis, keepdim=True, unbiased=False)
    return (x - m) / torch.sqrt(v + eps)
def _scatter_add(tgt, idx, src, axis=0):
    return tgt.clone().index_add_(axis, idx, src)
def _segment_sum(src, seg, n):
    out = torch.zeros((n,) + src.shape[1:], dtype=src.dtype)
    return out.index_add_(0, seg, src)
def _pad(x, pw):
    flat = tuple(v for pair in reversed(pw) for v in pair)
    return torch.nn.functional.pad(x, flat)

kernel_name = 'gated_mix__mha_block_cached__dense_activation_squared_relu__decode'

def setup_inputs():

    _w = (lambda a: (lambda t: t.to(torch.bfloat16) if t.is_floating_point() else t)(torch.as_tensor(a)))
    def _A_setup():
        B, Sq, D = 4, 1, 512
        H, Sk, Dh = 32, 8192, 128
        return {
            "x": _w((lambda *s: torch.randn(*s, dtype=torch.bfloat16) * 0.05)(B, Sq, D)),
            "k_cache": _w((lambda *s: torch.randn(*s, dtype=torch.bfloat16) * 6.4)(B, H, Sk, Dh)),
            "v_cache": _w((lambda *s: torch.randn(*s, dtype=torch.bfloat16) * 0.4)(B, H, Sk, Dh)),
            "wq": _w((lambda *s: torch.randn(*s, dtype=torch.bfloat16) * 6.4)(D, H * Dh) * (D ** -0.5)),
            "wo": _w((lambda *s: torch.randn(*s, dtype=torch.bfloat16) * 0.4)(H * Dh, D) * ((H * Dh) ** -0.5)),
        }
    _A_in = _A_setup()

    def _B_setup():
        B, S, D, F = 4, 1, 512, 1792
        return {
            "x": _w((lambda *s: torch.randn(*s, dtype=torch.bfloat16) * 0.05)(B, S, D)),
            "w1": _w((lambda *s: torch.randn(*s, dtype=torch.bfloat16) * 0.05)(D, F)),
            "b1": _w((lambda *s: torch.randn(*s, dtype=torch.bfloat16) * 0.05)(F)),
            "w2": _w((lambda *s: torch.randn(*s, dtype=torch.bfloat16) * 0.05)(F, D)),
            "b2": _w((lambda *s: torch.randn(*s, dtype=torch.bfloat16) * 0.05)(D)),
        }
    _B_in = _B_setup()

    return {
        "A_x": _A_in["x"],
        "A_k_cache": _A_in["k_cache"],
        "A_v_cache": _A_in["v_cache"],
        "A_wq": _A_in["wq"],
        "A_wo": _A_in["wo"],
        "B_x": _B_in["x"],
        "B_w1": _B_in["w1"],
        "B_b1": _B_in["b1"],
        "B_w2": _B_in["w2"],
        "B_b2": _B_in["b2"],
        "gate_w": _w((lambda *s: torch.randn(*s, dtype=torch.bfloat16) * 0.05)(512) * 16.0),
    }

def reference(A_x, A_k_cache, A_v_cache, A_wq, A_wo, B_x, B_w1, B_b1, B_w2, B_b2, gate_w):
    def _A_ref(x, k_cache, v_cache, wq, wo):
        B, Sq, D = x.shape
        H, Dh = 32, 128
        q = (lambda x, *d: x.permute(*d))((x @ wq).reshape(B, Sq, H, Dh), 0, 2, 1, 3)
        scores = torch.einsum("bhqd,bhkd->bhqk", q, k_cache) * (Dh ** -0.5)
        p = _softmax(scores, axis=-1)
        o = torch.einsum("bhqk,bhkd->bhqd", p, v_cache)
        return (lambda x, *d: x.permute(*d))(o, 0, 2, 1, 3).reshape(B, Sq, H * Dh) @ wo

    def _B_ref(x, w1, b1, w2, b2):
        h = torch.einsum("bsd,df->bsf", x, w1) + b1
        zero = torch.zeros_like(h)
        r = torch.where(h > zero, h, zero)
        h = r * r
        out = torch.einsum("bsf,fd->bsd", h, w2) + b2
        return out

    x = A_x
    g = _sigmoid((x * gate_w).sum(-1, keepdims=True))
    a = _A_ref(x, A_k_cache, A_v_cache, A_wq, A_wo)
    b = _B_ref(x, B_w1, B_b1, B_w2, B_b2)
    return g * a + (1 - g) * b
```

```python
import sys, argparse

NAME = "gated_mix__mha_block_cached__dense_activation_squared_relu__decode"

HEADER = """; Kernarg layout (112 bytes, ptrs only, base s[0:1]):
"""

class Asm:
    def __init__(self):
        self.lines = []
        self.vmq = []
    def e(self, s):
        self.lines.append("    " + s)
    def c(self, s):
        self.lines.append("    ; " + s)
    def label(self, l):
        self.lines.append(l + ":")
    def raw(self, s):
        self.lines.append(s)
    def vmem(self, s, tag):
        self.e(s)
        self.vmq.append(tag)
    def wait_vm(self, tag):
        idx = max(i for i, t in enumerate(self.vmq) if t == tag)
        n = len(self.vmq) - idx - 1
        assert n <= 63
        self.e(f"s_waitcnt vmcnt({n})")
    def text(self):
        return "\n".join(self.lines) + "\n"

def vr(base, n):
    return f"v[{base}:{base+n-1}]"
def sr(base, n):
    return f"s[{base}:{base+n-1}]"

SCALE_LOG2E = 0.08838834764831845 * 1.4426950408889634
import struct
def f32bits(x):
    return struct.unpack("<I", struct.pack("<f", x))[0]

WS_Y = 0
WS_Z = 512 * 1024
WS_ML = 1024 * 1024
WS_SIZE = WS_ML + 2048
WS_STAMP = 2 * 1024 * 1024

def gen_k1(a, opt):
    pol = opt.policy
    pol = (" " + pol) if pol else ""
    wpol = (" " + opt.wpolicy) if opt.wpolicy else ""
    sK, sV, sWQ, sWO, sX, sW1, sW2, sWS = 24, 28, 32, 36, 40, 44, 48, 52
    sH, sB, sS, sW, sU, sIDX = 56, 57, 58, 59, 60, 61
    sT0, sT1, sT2, sT3 = 62, 63, 64, 65
    sPLO, sPHI, sC = 72, 73, 74
    sPAR = 76
    sB1 = 78
    sCNT = 80
    sST = 82
    vLane, vK0, vK1 = 1, 2, 3
    vQ, vO, vS = 4, 8, 16
    vM, vL, vPlo, vPhi, vAl = 24, 25, 26, 27, 28
    vT = 29
    vXF = 34
    vXQ = 36
    vA0, vA1, vZ = 44, 45, 46
    vW1 = 48
    vKb, vVb, vWQ, vW2 = 64, 96, 128, 192
    LDS_QP, LDS_HP, LDS_ZP, LDS_OP, LDS_ML = 0, 4096, 8192, 24576, 28672

    def stamp(i):
        if opt.stamps:
            a.e(f"s_memrealtime {sr(sST+2*i,2)}")

    a.raw(f".globl {NAME}_kernel")
    a.raw(".p2align 8")
    a.raw(f".type {NAME}_kernel,@function")
    a.label(f"{NAME}_kernel")
    a.e("s_cmp_ge_u32 s2, 256")
    a.e("s_cbranch_scc1 L_k1_end")
    stamp(0)
    a.e("s_load_dwordx16 s[4:19], s[0:1], 0")
    a.e("s_load_dwordx2 s[20:21], s[0:1], 64")
    a.e("s_load_dwordx2 s[22:23], s[0:1], 104")
    a.c("decode workgroup id -> h, b, s, u")
    a.e(f"s_and_b32 {sr(sT0,1)[2:-1].split(':')[0].join(['s',''])}, s2, 7")
    a.e(f"s_lshr_b32 s{sT1}, s2, 3")
    a.e(f"s_lshr_b32 s{sT2}, s{sT1}, 3")
    a.e(f"s_lshl_b32 s{sH}, s{sT0}, 2")
    a.e(f"s_add_u32 s{sH}, s{sH}, s{sT2}")
    a.e(f"s_and_b32 s{sT1}, s{sT1}, 7")
    a.e(f"s_lshr_b32 s{sB}, s{sT1}, 1")
    a.e(f"s_and_b32 s{sS}, s{sT1}, 1")
    a.e(f"s_lshl_b32 s{sU}, s{sH}, 1")
    a.e(f"s_add_u32 s{sU}, s{sU}, s{sS}")
    a.e(f"s_lshl_b32 s{sIDX}, s{sB}, 6")
    a.e(f"s_add_u32 s{sIDX}, s{sIDX}, s{sU}")
    a.e(f"v_lshrrev_b32 v{vT}, 6, v0")
    a.e(f"v_and_b32 v{vLane}, 63, v0")
    a.e(f"s_mov_b32 s{sPLO}, 0x05040100")
    a.e(f"v_readfirstlane_b32 s{sW}, v{vT}")
    a.e(f"s_mov_b32 s{sPHI}, 0x07060302")
    a.e(f"s_mov_b32 s{sC}, 0x{f32bits(SCALE_LOG2E):08x}")
    a.e(f"s_mov_b32 s{sPAR}, 0xaaaaaaaa")
    a.e(f"s_mov_b32 s{sPAR+1}, 0xaaaaaaaa")
    a.c("per-lane offsets")
    a.e(f"v_lshrrev_b32 v{vT}, 4, v{vLane}")
    a.e(f"v_and_b32 v{vT+1}, 15, v{vLane}")
    a.e(f"v_lshlrev_b32 v{vA0}, 5, v{vT}")
    a.e(f"v_lshlrev_b32 v{vA1}, 17, v{vT}")
    a.e(f"v_lshl_add_u32 v{vA1}, v{vT+1}, 4, v{vA1}")
    a.e(f"v_lshrrev_b32 v{vT+2}, 2, v{vLane}")
    a.e(f"v_lshlrev_b32 v{vT+3}, 3, v{vT+2}")
    a.e(f"v_mul_u32_u24 v{vT+4}, 14336, v{vT+2}")
    a.e(f"v_and_b32 v{vT+2}, 3, v{vLane}")
    a.e(f"v_lshl_add_u32 v{vT+4}, v{vT+2}, 4, v{vT+4}")
    a.e(f"v_lshlrev_b32 v{vZ}, 4, v{vLane}")
    a.e(f"s_lshl_b32 s{sT0}, s{sW}, 13")
    a.e(f"v_add_u32 v{vK0}, s{sT0}, v{vZ}")
    a.e(f"v_add_u32 v{vK1}, 0x1000, v{vK0}")
    a.e("s_waitcnt lgkmcnt(0)")
    a.c("SRDs")
    def srd(d, plo, off_sgpr, nrec):
        if off_sgpr is None:
            a.e(f"s_mov_b32 s{d}, s{plo}")
            a.e(f"s_and_b32 s{d+1}, s{plo+1}, 0xffff")
        else:
            a.e(f"s_add_u32 s{d}, s{plo}, s{off_sgpr}")
            a.e(f"s_addc_u32 s{d+1}, s{plo+1}, 0")
            a.e(f"s_and_b32 s{d+1}, s{d+1}, 0xffff")
        a.e(f"s_mov_b32 s{d+2}, {nrec}")
        a.e(f"s_mov_b32 s{d+3}, 0x00020000")
    srd(sX, 4, None, "0x1000")
    a.e(f"s_lshl_b32 s{sT0}, s{sH}, 8")
    srd(sWQ, 10, sT0, "0x400000")
    a.e(f"s_sub_u32 s{sWQ+2}, s{sWQ+2}, s{sT0}")
    a.e(f"s_lshl_b32 s{sT1}, s{sB}, 10")
    a.e(f"s_lshl_b32 s{sT2}, s{sW}, 7")
    a.e(f"s_add_u32 s{sT1}, s{sT1}, s{sT2}")
    a.vmem(f"buffer_load_dwordx4 {vr(vXQ,4)}, v{vA0}, {sr(sX,4)}, s{sT1} offen", "xq")
    a.vmem(f"buffer_load_dwordx4 {vr(vXQ+4,4)}, v{vA0}, {sr(sX,4)}, s{sT1} offen offset:16", "xq")
    a.e(f"s_lshl_b32 s{sT2}, s{sW}, 19")
    for j in range(16):
        a.vmem(f"buffer_load_dwordx4 {vr(vWQ+4*j,4)}, v{vA1}, {sr(sWQ,4)}, s{sT2} offen{wpol}", f"wq{j}")
        if j < 15:
            a.e(f"s_add_u32 s{sT2}, s{sT2}, 0x2000")
    a.e(f"s_min_u32 s{sT3}, s{sU}, 55")
    a.e(f"s_lshl_b32 s{sT0}, s{sT3}, 6")
    srd(sW1, 16, sT0, "0x1c0000")
    a.e(f"s_sub_u32 s{sW1+2}, s{sW1+2}, s{sT0}")
    a.e(f"s_lshl_b32 s{sT0}, s{sT3}, 15")
    a.e(f"s_lshl_b32 s{sT2}, s{sW}, 12")
    a.e(f"s_add_u32 s{sT0}, s{sT0}, s{sT2}")
    srd(sW2, 20, sT0, "0x1000")
    a.e(f"s_cmp_ge_u32 s{sU}, 56")
    a.e(f"s_cselect_b32 s{sW1+2}, 0, s{sW1+2}")
    a.e(f"s_cselect_b32 s{sW2+2}, 0, s{sW2+2}")
    a.e(f"s_lshl_b32 s{sT0}, s{sT3}, 6")
    a.e(f"s_lshl_b32 s{sT2}, s{sW}, 3")
    a.e(f"s_add_u32 s{sT0}, s{sT0}, s{sT2}")
    a.e(f"s_add_u32 s18, s18, s{sT0}")
    a.e(f"s_addc_u32 s19, s19, 0")
    a.e(f"s_load_dwordx2 {sr(sB1,2)}, s[18:19], 0")
    a.vmem(f"buffer_load_dwordx2 {vr(vXF,2)}, v{vT+3}, {sr(sX,4)}, s{sT1} offen", "xf")
    a.e(f"s_mul_i32 s{sT2}, s{sW}, {64*3584}")
    for j in range(4):
        a.vmem(f"buffer_load_dwordx4 {vr(vW1+4*j,4)}, v{vT+4}, {sr(sW1,4)}, s{sT2} offen{wpol}", f"w1{j}")
        if j < 3:
            a.e(f"s_add_u32 s{sT2}, s{sT2}, 3584")
    for j in range(4):
        a.vmem(f"buffer_load_dwordx4 {vr(vW2+4*j,4)}, v{vZ}, {sr(sW2,4)}, 0 offen offset:{j*1024}{wpol}", f"w2{j}")
    a.e(f"s_lshl_b32 s{sT0}, s{sB}, 5")
    a.e(f"s_add_u32 s{sT0}, s{sT0}, s{sH}")
    a.e(f"s_lshl_b32 s{sT0}, s{sT0}, 1")
    a.e(f"s_add_u32 s{sT0}, s{sT0}, s{sS}")
    a.e(f"s_lshl_b32 s{sT0}, s{sT0}, 20")
    srd(sK, 6, sT0, "0x100000")
    srd(sV, 8, sT0, "0x100000")
    def kload(j):
        return f"buffer_load_dwordx4 {vr(vKb+4*j,4)}, v{vK0+(j>>2)}, {sr(sK,4)}, 0 offen offset:{(j&3)*1024}{pol}"
    def vload(j):
        return f"buffer_load_dwordx4 {vr(vVb+4*j,4)}, v{vK0+(j>>2)}, {sr(sV,4)}, 0 offen offset:{(j&3)*1024}{pol}"
    for j in range(8):
        a.vmem(kload(j), f"k{j}")
    for j in range(8):
        a.vmem(vload(j), f"v{j}")
    a.e(f"s_lshl_b32 s{sT0}, s{sH}, 17")
    a.e(f"s_lshl_b32 s{sT2}, s{sW}, 14")
    a.e(f"s_add_u32 s{sT0}, s{sT0}, s{sT2}")
    srd(sWO, 12, sT0, "0x4000")
    srd(sWS, 22, None, f"0x{WS_SIZE:x}")
    stamp(1)
    a.c("q partial: acc[8] in vO")
    for k in range(8):
        a.e(f"v_mov_b32 v{vO+k}, 0")
        a.e(f"v_mov_b32 v{vS+k}, 0")
    for p in range(8):
        a.wait_vm(f"wq{2*p+1}")
        for d in range(4):
            r0 = vWQ + 8*p + d
            r1 = vWQ + 8*p + 4 + d
            a.e(f"v_perm_b32 v{vT}, v{r1}, v{r0}, s{sPLO}")
            a.e(f"v_perm_b32 v{vT+1}, v{r1}, v{r0}, s{sPHI}")
            a.e(f"v_dot2c_f32_bf16 v{vO+2*d}, v{vT}, v{vXQ+p}")
            a.e(f"v_dot2c_f32_bf16 v{vO+2*d+1}, v{vT+1}, v{vXQ+p}")
    a.c("wo prefetch into the wq registers")
    for j in range(16):
        if (j & 3) == 0:
            a.e(f"s_mov_b32 s{sT2}, {(j>>2)*4096}")
        a.vmem(f"buffer_load_dwordx4 {vr(vWQ+4*j,4)}, v{vZ}, {sr(sWO,4)}, s{sT2} offen offset:{(j&3)*1024}{wpol}", f"wo{j}")
    a.c("FFN stage 1 partial: acc[8] in vS")
    a.wait_vm("w13")
    for p in range(2):
        for d in range(4):
            r0 = vW1 + 8*p + d
            r1 = vW1 + 8*p + 4 + d
            a.e(f"v_perm_b32 v{vT}, v{r1}, v{r0}, s{sPLO}")
            a.e(f"v_perm_b32 v{vT+1}, v{r1}, v{r0}, s{sPHI}")
            a.e(f"v_dot2c_f32_bf16 v{vS+2*d}, v{vT}, v{vXF+p}")
            a.e(f"v_dot2c_f32_bf16 v{vS+2*d+1}, v{vT+1}, v{vXF+p}")
    a.e("s_nop 2")
    def reduce_scatter8(base):
        for k in range(4):
            a.e(f"v_permlane32_swap_b32 v{base+k}, v{base+4+k}")
        a.e("s_nop 1")
        for k in range(4):
            a.e(f"v_add_f32 v{base+k}, v{base+k}, v{base+4+k}")
        a.e("s_nop 1")
        for k in range(2):
            a.e(f"v_permlane16_swap_b32 v{base+k}, v{base+2+k}")
        a.e("s_nop 1")
        for k in range(2):
            a.e(f"v_add_f32 v{base+k}, v{base+k}, v{base+2+k}")
    reduce_scatter8(vO)
    reduce_scatter8(vS)
    a.e("s_nop 1")
    for k in range(2):
        a.e(f"v_add_f32_dpp v{vS+k}, v{vS+k}, v{vS+k} row_ror:8 row_mask:0xf bank_mask:0xf")
    a.e("s_nop 1")
    for k in range(2):
        a.e(f"v_add_f32_dpp v{vS+k}, v{vS+k}, v{vS+k} row_ror:4 row_mask:0xf bank_mask:0xf")
    a.e(f"v_lshrrev_b32 v{vT}, 4, v{vLane}")
    a.e(f"v_lshlrev_b32 v{vT}, 3, v{vT}")
    a.e(f"v_and_b32 v{vT+1}, 15, v{vLane}")
    a.e(f"v_lshl_add_u32 v{vA0}, v{vT+1}, 5, v{vT}")
    a.e(f"s_lshl_b32 s{sT0}, s{sW}, 9")
    a.e(f"v_add_u32 v{vT+2}, s{sT0}, v{vA0}")
    a.e(f"ds_write_b64 v{vT+2}, {vr(vO,2)} offset:{LDS_QP}")
    a.e(f"v_and_b32 v{vT+1}, 3, v{vLane}")
    a.e(f"v_lshl_add_u32 v{vT+1}, v{vT+1}, 5, v{vT}")
    a.e(f"s_lshl_b32 s{sT0}, s{sW}, 7")
    a.e(f"v_add_u32 v{vT+1}, s{sT0}, v{vT+1}")
    a.e(f"ds_write_b64 v{vT+1}, {vr(vS,2)} offset:{LDS_HP}")
    a.e("s_waitcnt lgkmcnt(0)")
    a.e("s_barrier")
    a.c("q = sum over waves, to bf16")
    a.e(f"v_and_b32 v{vT}, 15, v{vLane}")
    a.e(f"v_lshlrev_b32 v{vT}, 5, v{vT}")
    for k in range(8):
        a.e(f"v_mov_b32 v{vO+k}, 0")
    for wp in range(4):
        for x in range(2):
            w_ = 2*wp + x
            a.e(f"ds_read_b128 {vr(vW1+8*x,4)}, v{vT} offset:{LDS_QP + w_*512}")
            a.e(f"ds_read_b128 {vr(vW1+8*x+4,4)}, v{vT} offset:{LDS_QP + w_*512 + 16}")
        a.e("s_waitcnt lgkmcnt(0)")
        for k in range(8):
            a.e(f"v_add_f32 v{vO+k}, v{vO+k}, v{vW1+k}")
            a.e(f"v_add_f32 v{vO+k}, v{vO+k}, v{vW1+8+k}")
    for d in range(4):
        a.e(f"v_cvt_pk_bf16_f32 v{vQ+d}, v{vO+2*d}, v{vO+2*d+1}")
    a.c("FFN hidden: 4 units for this wave")
    a.e(f"s_lshl_b32 s{sT0}, s{sW}, 4")
    a.e(f"v_mov_b32 v{vT}, s{sT0}")
    for x in range(4):
        a.e(f"ds_read_b128 {vr(vW1+4*x,4)}, v{vT} offset:{LDS_HP + x*128}")
    a.e("s_waitcnt lgkmcnt(0)")
    for k in range(4):
        a.e(f"v_add_f32 v{vS+k}, v{vW1+k}, v{vW1+4+k}")
        a.e(f"v_add_f32 v{vS+k}, v{vS+k}, v{vW1+8+k}")
        a.e(f"v_add_f32 v{vS+k}, v{vS+k}, v{vW1+12+k}")
    for x in range(4):
        a.e(f"ds_read_b128 {vr(vW1+4*x,4)}, v{vT} offset:{LDS_HP + (4+x)*128}")
    a.e("s_waitcnt lgkmcnt(0)")
    for k in range(4):
        for x in range(4):
            a.e(f"v_add_f32 v{vS+k}, v{vS+k}, v{vW1+4*x+k}")
    a.c("h = bf16(bf16(sum) + b1); r = relu; h2 = bf16(r*r)")
    a.e(f"v_cvt_pk_bf16_f32 v{vT}, v{vS}, v{vS+1}")
    a.e(f"v_cvt_pk_bf16_f32 v{vT+1}, v{vS+2}, v{vS+3}")
    a.e(f"s_lshl_b32 s{sT0}, s{sB1}, 16")
    a.e(f"s_and_b32 s{sT1}, s{sB1}, 0xffff0000")
    a.e(f"s_lshl_b32 s{sT2}, s{sB1+1}, 16")
    a.e(f"s_and_b32 s{sT3}, s{sB1+1}, 0xffff0000")
    a.e(f"v_lshlrev_b32 v{vS}, 16, v{vT}")
    a.e(f"v_and_b32 v{vS+1}, 0xffff0000, v{vT}")
    a.e(f"v_lshlrev_b32 v{vS+2}, 16, v{vT+1}")
    a.e(f"v_and_b32 v{vS+3}, 0xffff0000, v{vT+1}")
    for k in range(4):
        a.e(f"v_add_f32 v{vS+k}, s{sT0+k}, v{vS+k}")
    a.e(f"v_cvt_pk_bf16_f32 v{vT}, v{vS}, v{vS+1}")
    a.e(f"v_cvt_pk_bf16_f32 v{vT+1}, v{vS+2}, v{vS+3}")
    a.e(f"v_lshlrev_b32 v{vS}, 16, v{vT}")
    a.e(f"v_and_b32 v{vS+1}, 0xffff0000, v{vT}")
    a.e(f"v_lshlrev_b32 v{vS+2}, 16, v{vT+1}")
    a.e(f"v_and_b32 v{vS+3}, 0xffff0000, v{vT+1}")
    for k in range(4):
        a.e(f"v_max_f32 v{vS+k}, 0, v{vS+k}")
    for k in range(4):
        a.e(f"v_mul_f32 v{vS+k}, v{vS+k}, v{vS+k}")
    a.e(f"v_cvt_pk_bf16_f32 v{vXF}, v{vS}, v{vS+1}")
    a.e(f"v_cvt_pk_bf16_f32 v{vXF+1}, v{vS+2}, v{vS+3}")
    a.c("FFN stage 2 partial")
    for k in range(8):
        a.e(f"v_mov_b32 v{vS+k}, 0")
    a.wait_vm("w23")
    for p in range(2):
        for d in range(4):
            r0 = vW2 + 8*p + d
            r1 = vW2 + 8*p + 4 + d
            a.e(f"v_perm_b32 v{vT}, v{r1}, v{r0}, s{sPLO}")
            a.e(f"v_perm_b32 v{vT+1}, v{r1}, v{r0}, s{sPHI}")
            a.e(f"v_dot2c_f32_bf16 v{vS+2*d}, v{vT}, v{vXF+p}")
            a.e(f"v_dot2c_f32_bf16 v{vS+2*d+1}, v{vT+1}, v{vXF+p}")
    a.e(f"s_lshl_b32 s{sT0}, s{sW}, 11")
    a.e(f"v_lshlrev_b32 v{vA1}, 5, v{vLane}")
    a.e(f"v_add_u32 v{vA1}, s{sT0}, v{vA1}")
    a.e("s_nop 0")
    a.e(f"ds_write_b128 v{vA1}, {vr(vS,4)} offset:{LDS_ZP}")
    a.e(f"ds_write_b128 v{vA1}, {vr(vS+4,4)} offset:{LDS_ZP+16}")
    a.e("s_waitcnt lgkmcnt(0)")
    a.e("s_barrier")
    a.e(f"v_lshlrev_b32 v{vT}, 2, v0")
    for x in range(8):
        a.e(f"ds_read_b32 v{vS+x}, v{vT} offset:{LDS_ZP + x*2048}")
    a.e("s_waitcnt lgkmcnt(0)")
    a.e(f"v_add_f32 v{vZ}, v{vS}, v{vS+1}")
    for x in range(2, 8):
        a.e(f"v_add_f32 v{vZ}, v{vZ}, v{vS+x}")
    a.c("init softmax state")
    for k in range(8):
        a.e(f"v_mov_b32 v{vO+k}, 0")
    a.e(f"v_mov_b32 v{vM}, 0xff7fffff")
    a.e(f"v_mov_b32 v{vL}, 0")
    stamp(2)

    def pos(j):
        return 4*(j >> 1) + (j & 1)
    def tile(vm):
        a.e(f"v_add_u32 v{vK0}, 0x10000, v{vK0}")
        a.e(f"v_add_u32 v{vK1}, 0x10000, v{vK1}")
        for j in range(8):
            a.e(f"s_waitcnt vmcnt({vm})")
            a.e(f"v_dot2_f32_bf16 v{vS+j}, v{vKb+4*j}, v{vQ}, 0")
            for d in range(1, 4):
                a.e(f"v_dot2_f32_bf16 v{vS+j}, v{vKb+4*j+d}, v{vQ+d}, v{vS+j}")
            a.e(kload(j))
        a.e("s_nop 1")
        for j in range(4):
            a.e(f"v_add_f32_dpp v{vS+j}, v{vS+j}, v{vS+j} row_ror:8 row_mask:0xf bank_mask:0x3")
        for j in range(4):
            a.e(f"v_add_f32_dpp v{vS+j}, v{vS+j+4}, v{vS+j+4} row_ror:8 row_mask:0xf bank_mask:0xc")
        for j in range(2):
            a.e(f"v_add_f32_dpp v{vS+j}, v{vS+j}, v{vS+j} row_half_mirror row_mask:0xf bank_mask:0x5")
        for j in range(2):
            a.e(f"v_add_f32_dpp v{vS+j}, v{vS+j+2}, v{vS+j+2} row_half_mirror row_mask:0xf bank_mask:0xa")
        a.e("s_nop 0")
        for j in range(2):
            a.e(f"v_add_f32_dpp v{vS+j}, v{vS+j}, v{vS+j} quad_perm:[1,0,3,2] row_mask:0xf bank_mask:0xf")
        a.e("s_nop 0")
        a.e(f"v_cndmask_b32 v{vT}, v{vS}, v{vS+1}, {sr(sPAR,2)}")
        a.e("s_nop 1")
        a.e(f"v_add_f32_dpp v{vT}, v{vT}, v{vT} quad_perm:[2,3,0,1] row_mask:0xf bank_mask:0xf")
        a.e(f"v_mul_f32 v{vT}, s{sC}, v{vT}")
        a.e("s_nop 1")
        a.e(f"v_max_f32_dpp v{vT+1}, v{vT}, v{vT} quad_perm:[1,0,3,2] row_mask:0xf bank_mask:0xf")
        a.e("s_nop 1")
        a.e(f"v_max_f32_dpp v{vT+1}, v{vT+1}, v{vT+1} row_ror:4 row_mask:0xf bank_mask:0xf")
        a.e("s_nop 1")
        a.e(f"v_max_f32_dpp v{vT+1}, v{vT+1}, v{vT+1} row_ror:8 row_mask:0xf bank_mask:0xf")
        a.e(f"v_max_f32 v{vT+1}, v{vT+1}, v{vM}")
        a.e(f"v_sub_f32 v{vAl}, v{vM}, v{vT+1}")
        a.e(f"v_sub_f32 v{vT}, v{vT}, v{vT+1}")
        a.e(f"v_exp_f32 v{vAl}, v{vAl}")
        a.e(f"v_exp_f32 v{vT}, v{vT}")
        a.e(f"v_mov_b32 v{vM}, v{vT+1}")
        a.e(f"v_cvt_pk_bf16_f32 v{vPlo}, v{vT}, 0")
        a.e(f"v_cvt_pk_bf16_f32 v{vPhi}, 0, v{vT}")
        a.e(f"v_fma_f32 v{vL}, v{vL}, v{vAl}, v{vT}")
        for k in range(8):
            a.e(f"v_mul_f32 v{vO+k}, v{vAl}, v{vO+k}")
        for j in range(8):
            a.e(f"s_waitcnt vmcnt({vm})")
            for d in range(4):
                a.e(f"v_dot2c_f32_bf16_dpp v{vO+2*d}, v{vPlo}, v{vVb+4*j+d} row_newbcast:{pos(j)} row_mask:0xf bank_mask:0xf")
                a.e(f"v_dot2c_f32_bf16_dpp v{vO+2*d+1}, v{vPhi}, v{vVb+4*j+d} row_newbcast:{pos(j)} row_mask:0xf bank_mask:0xf")
            a.e(vload(j))
    a.c("tile 0 (wo loads are queued behind it)")
    tile(31)
    a.e(f"s_mov_b32 s{sCNT}, 15")
    a.raw(".p2align 6")
    a.label("L_k1_loop")
    tile(15)
    a.e(f"s_sub_u32 s{sCNT}, s{sCNT}, 1")
    a.e(f"s_cmp_lg_u32 s{sCNT}, 0")
    a.e("s_cbranch_scc1 L_k1_loop")
    stamp(3)
    a.c("in-wave combine")
    a.e("s_nop 1")
    def allred_rows(reg, t0, t1, op):
        a.e(f"v_mov_b32 v{t0}, v{reg}")
        a.e(f"v_mov_b32 v{t1}, v{reg}")
        a.e("s_nop 1")
        a.e(f"v_permlane32_swap_b32 v{t0}, v{t1}")
        a.e("s_nop 1")
        a.e(f"{op} v{t0}, v{t0}, v{t1}")
        a.e(f"v_mov_b32 v{t1}, v{t0}")
        a.e("s_nop 1")
        a.e(f"v_permlane16_swap_b32 v{t0}, v{t1}")
        a.e("s_nop 1")
        a.e(f"{op} v{reg}, v{t0}, v{t1}")
    a.e(f"v_mov_b32 v{vT+2}, v{vM}")
    allred_rows(vT+2, vT, vT+1, "v_max_f32")
    a.e(f"v_sub_f32 v{vAl}, v{vM}, v{vT+2}")
    a.e(f"v_exp_f32 v{vAl}, v{vAl}")
    a.e(f"v_mov_b32 v{vM}, v{vT+2}")
    a.e(f"v_mul_f32 v{vL}, v{vAl}, v{vL}")
    for k in range(8):
        a.e(f"v_mul_f32 v{vO+k}, v{vAl}, v{vO+k}")
    a.e("s_nop 0")
    a.e(f"v_add_f32_dpp v{vL}, v{vL}, v{vL} quad_perm:[1,0,3,2] row_mask:0xf bank_mask:0xf")
    a.e("s_nop 1")
    a.e(f"v_add_f32_dpp v{vL}, v{vL}, v{vL} quad_perm:[2,3,0,1] row_mask:0xf bank_mask:0xf")
    a.e("s_nop 1")
    a.e(f"v_add_f32_dpp v{vL}, v{vL}, v{vL} row_ror:4 row_mask:0xf bank_mask:0xf")
    a.e("s_nop 1")
    a.e(f"v_add_f32_dpp v{vL}, v{vL}, v{vL} row_ror:8 row_mask:0xf bank_mask:0xf")
    allred_rows(vL, vT, vT+1, "v_add_f32")
    a.e(f"v_mul_f32 v{vL}, 0.5, v{vL}")
    reduce_scatter8(vO)
    a.e(f"s_lshl_b32 s{sT0}, s{sW}, 9")
    a.e(f"v_add_u32 v{vT+2}, s{sT0}, v{vA0}")
    a.e(f"ds_write_b64 v{vT+2}, {vr(vO,2)} offset:{LDS_OP}")
    a.e(f"s_lshl_b32 s{sT0}, s{sW}, 3")
    a.e(f"v_mov_b32 v{vT+2}, s{sT0}")
    a.e(f"ds_write_b64 v{vT+2}, {vr(vM,2)} offset:{LDS_ML}")
    a.e("s_waitcnt lgkmcnt(0)")
    a.e("s_barrier")
    a.c("cross-wave combine: lane (w'=l>>3, p=l&7)")
    a.e(f"v_lshrrev_b32 v{vT}, 3, v{vLane}")
    a.e(f"v_and_b32 v{vT+1}, 7, v{vLane}")
    a.e(f"v_lshlrev_b32 v{vT+1}, 3, v{vT+1}")
    a.e(f"v_lshl_add_u32 v{vT+1}, v{vT}, 9, v{vT+1}")
    a.e(f"s_lshl_b32 s{sT0}, s{sW}, 6")
    a.e(f"v_add_u32 v{vT+1}, s{sT0}, v{vT+1}")
    a.e(f"v_lshlrev_b32 v{vT}, 3, v{vT}")
    a.e(f"ds_read_b64 {vr(vO,2)}, v{vT+1} offset:{LDS_OP}")
    a.e(f"ds_read_b64 {vr(vM,2)}, v{vT} offset:{LDS_ML}")
    a.e("s_waitcnt lgkmcnt(0)")
    a.e(f"v_max_f32_dpp v{vAl}, v{vM}, v{vM} row_ror:8 row_mask:0xf bank_mask:0xf")
    allred_rows(vAl, vT, vT+1, "v_max_f32")
    a.e(f"v_sub_f32 v{vT+2}, v{vM}, v{vAl}")
    a.e(f"v_exp_f32 v{vT+2}, v{vT+2}")
    a.e(f"v_mov_b32 v{vM}, v{vAl}")
    a.e(f"v_mul_f32 v{vO}, v{vT+2}, v{vO}")
    a.e(f"v_mul_f32 v{vO+1}, v{vT+2}, v{vO+1}")
    a.e(f"v_mul_f32 v{vL}, v{vT+2}, v{vL}")
    a.e("s_nop 0")
    for r_ in (vO, vO+1, vL):
        a.e(f"v_add_f32_dpp v{r_}, v{r_}, v{r_} row_ror:8 row_mask:0xf bank_mask:0xf")
    for r_ in (vO, vO+1, vL):
        allred_rows(r_, vT, vT+1, "v_add_f32")
    a.e(f"v_cvt_pk_bf16_f32 v{vPlo}, v{vO}, v{vO+1}")
    a.c("projection through wo rows of this wave")
    for k in range(8):
        a.e(f"v_mov_b32 v{vS+k}, 0")
    a.e("s_waitcnt vmcnt(16)")
    for p in range(8):
        for d in range(4):
            r0 = vWQ + 8*p + d
            r1 = vWQ + 8*p + 4 + d
            a.e(f"v_perm_b32 v{vT}, v{r1}, v{r0}, s{sPLO}")
            a.e(f"v_perm_b32 v{vT+1}, v{r1}, v{r0}, s{sPHI}")
            a.e(f"v_dot2c_f32_bf16_dpp v{vS+2*d}, v{vPlo}, v{vT} row_newbcast:{p} row_mask:0xf bank_mask:0xf")
            a.e(f"v_dot2c_f32_bf16_dpp v{vS+2*d+1}, v{vPlo}, v{vT+1} row_newbcast:{p} row_mask:0xf bank_mask:0xf")
    a.e("s_nop 2")
    a.e(f"ds_write_b128 v{vA1}, {vr(vS,4)} offset:{LDS_ZP}")
    a.e(f"ds_write_b128 v{vA1}, {vr(vS+4,4)} offset:{LDS_ZP+16}")
    a.e("s_waitcnt lgkmcnt(0)")
    a.e("s_barrier")
    a.e(f"v_lshlrev_b32 v{vT}, 2, v0")
    for x in range(8):
        a.e(f"ds_read_b32 v{vS+x}, v{vT} offset:{LDS_ZP + x*2048}")
    a.e(f"s_lshl_b32 s{sT0}, s{sIDX}, 11")
    a.e(f"s_add_u32 s{sT1}, s{sT0}, {WS_Z}")
    a.e(f"s_lshl_b32 s{sT2}, s{sIDX}, 3")
    a.e(f"s_add_u32 s{sT2}, s{sT2}, {WS_ML}")
    a.e("s_waitcnt lgkmcnt(0)")
    a.e(f"v_add_f32 v{vS}, v{vS}, v{vS+1}")
    for x in range(2, 8):
        a.e(f"v_add_f32 v{vS}, v{vS}, v{vS+x}")
    a.e(f"buffer_store_dword v{vS}, v{vT}, {sr(sWS,4)}, s{sT0} offen")
    a.e(f"buffer_store_dword v{vZ}, v{vT}, {sr(sWS,4)}, s{sT1} offen")
    a.e(f"v_cmp_eq_u32 vcc, 0, v0")
    a.e(f"s_and_saveexec_b64 s[66:67], vcc")
    a.e("s_cbranch_execz L_k1_nost")
    a.e(f"v_mov_b32 v{vT}, 0")
    a.e(f"buffer_store_dwordx2 {vr(vM,2)}, v{vT}, {sr(sWS,4)}, s{sT2} offen")
    if opt.stamps:
        stamp(4)
        a.e("s_waitcnt lgkmcnt(0)")
        a.e(f"s_mov_b32 s{sWS+2}, 0x1000000")
        a.e(f"s_lshl_b32 s{sT0}, s2, 6")
        a.e(f"s_add_u32 s{sT0}, s{sT0}, {WS_STAMP}")
        for i in range(5):
            a.e(f"v_mov_b32 v{vT}, {i*8}")
            a.e(f"v_mov_b32 v{vS}, s{sST+2*i}")
            a.e(f"v_mov_b32 v{vS+1}, s{sST+2*i+1}")
            a.e(f"buffer_store_dwordx2 {vr(vS,2)}, v{vT}, {sr(sWS,4)}, s{sT0} offen")
            a.e("s_nop 1")
    a.label("L_k1_nost")
    a.label("L_k1_end")
    a.e("s_endpgm")
    return dict(name=f"{NAME}_kernel", vgpr=208, sgpr=96)

def gen_k2(a, opt):
    sX, sG, sY, sZ, sML, sB2, sOUT = 24, 28, 32, 36, 40, 44, 48
    sB, sCG, sT0, sT1, sW = 56, 57, 58, 59, 60
    vY, vZ4, vML = 4, 8, 12
    vT = 16
    vG = 24
    a.raw(".globl final_kernel")
    a.raw(".p2align 8")
    a.raw(".type final_kernel,@function")
    a.label("final_kernel")
    a.e("s_cmp_ge_u32 s2, 128")
    a.e("s_cbranch_scc1 L_k2_end")
    a.e("s_load_dwordx2 s[4:5], s[0:1], 0")
    a.e("s_load_dwordx4 s[8:11], s[0:1], 72")
    a.e("s_load_dwordx2 s[12:13], s[0:1], 88")
    a.e("s_load_dwordx2 s[14:15], s[0:1], 104")
    a.e(f"s_lshr_b32 s{sB}, s2, 5")
    a.e(f"s_and_b32 s{sCG}, s2, 31")
    a.e(f"v_lshrrev_b32 v1, 2, v0")
    a.e(f"v_and_b32 v2, 3, v0")
    a.e(f"v_lshlrev_b32 v3, 11, v1")
    a.e(f"v_lshl_add_u32 v3, v2, 4, v3")
    a.e(f"v_and_b32 v{vT}, 62, v1")
    a.e(f"v_lshlrev_b32 v{vT}, 3, v{vT}")
    a.e(f"v_lshlrev_b32 v{vT+1}, 2, v0")
    a.e(f"v_lshrrev_b32 v{vT+2}, 6, v0")
    a.e("s_nop 0")
    a.e(f"v_readfirstlane_b32 s{sW}, v{vT+2}")
    a.e("s_waitcnt lgkmcnt(0)")
    def srd(d, plo, off_sgpr, nrec):
        if off_sgpr is None:
            a.e(f"s_mov_b32 s{d}, s{plo}")
            a.e(f"s_and_b32 s{d+1}, s{plo+1}, 0xffff")
        else:
            a.e(f"s_add_u32 s{d}, s{plo}, s{off_sgpr}")
            a.e(f"s_addc_u32 s{d+1}, s{plo+1}, 0")
            a.e(f"s_and_b32 s{d+1}, s{d+1}, 0xffff")
        a.e(f"s_mov_b32 s{d+2}, {nrec}")
        a.e(f"s_mov_b32 s{d+3}, 0x00020000")
    a.e(f"s_lshl_b32 s{sT0}, s{sB}, 17")
    a.e(f"s_lshl_b32 s{sT1}, s{sCG}, 6")
    a.e(f"s_add_u32 s{sT0}, s{sT0}, s{sT1}")
    srd(sY, 14, sT0, f"{64*2048}")
    a.e(f"s_sub_u32 s{sY+2}, s{sY+2}, s{sT1}")
    a.e(f"s_add_u32 s{sT0}, s{sT0}, {WS_Z}")
    srd(sZ, 14, sT0, f"{56*2048}")
    a.e(f"s_sub_u32 s{sZ+2}, s{sZ+2}, s{sT1}")
    a.e(f"s_lshl_b32 s{sT0}, s{sB}, 9")
    a.e(f"s_add_u32 s{sT0}, s{sT0}, {WS_ML}")
    srd(sML, 14, sT0, "512")
    a.e(f"buffer_load_dwordx4 {vr(vML,4)}, v{vT}, {sr(sML,4)}, 0 offen")
    a.e(f"buffer_load_dwordx4 {vr(vY,4)}, v3, {sr(sY,4)}, 0 offen")
    a.e(f"buffer_load_dwordx4 {vr(vZ4,4)}, v3, {sr(sZ,4)}, 0 offen")
    a.e(f"s_lshl_b32 s{sT0}, s{sB}, 10")
    srd(sX, 4, sT0, "1024")
    srd(sG, 10, None, "1024")
    a.e(f"buffer_load_dword v{vG}, v{vT+1}, {sr(sX,4)}, 0 offen")
    a.e(f"buffer_load_dword v{vG+1}, v{vT+1}, {sr(sG,4)}, 0 offen")
    a.e(f"s_lshl_b32 s{sT0}, s{sCG}, 5")
    srd(sB2, 8, sT0, "32")
    a.e(f"v_lshlrev_b32 v{vT+3}, 1, v0")
    a.e(f"buffer_load_ushort v{vG+2}, v{vT+3}, {sr(sB2,4)}, 0 offen")
    a.e(f"s_lshl_b32 s{sT0}, s{sB}, 10")
    a.e(f"s_lshl_b32 s{sT1}, s{sCG}, 5")
    a.e(f"s_add_u32 s{sT0}, s{sT0}, s{sT1}")
    srd(sOUT, 12, sT0, "32")
    a.e("s_waitcnt vmcnt(5)")
    a.c("softmax weight of this row")
    a.e(f"v_max_f32 v{vT}, v{vML}, v{vML+2}")
    a.e(f"v_sub_f32 v{vT+1}, v{vML}, v{vT}")
    a.e(f"v_sub_f32 v{vT+2}, v{vML+2}, v{vT}")
    a.e(f"v_exp_f32 v{vT+1}, v{vT+1}")
    a.e(f"v_exp_f32 v{vT+2}, v{vT+2}")
    a.e(f"v_and_b32 v{vT+4}, 1, v1")
    a.e(f"v_cmp_eq_u32 vcc, 1, v{vT+4}")
    a.e(f"v_mul_f32 v{vT+3}, v{vT+1}, v{vML+1}")
    a.e(f"v_fma_f32 v{vT+3}, v{vT+2}, v{vML+3}, v{vT+3}")
    a.e(f"v_cndmask_b32 v{vT+1}, v{vT+1}, v{vT+2}, vcc")
    a.e(f"v_rcp_f32 v{vT+3}, v{vT+3}")
    a.e("s_nop 0")
    a.e(f"v_mul_f32 v{vT+1}, v{vT+1}, v{vT+3}")
    a.e("s_waitcnt vmcnt(3)")
    for k in range(4):
        a.e(f"v_mul_f32 v{vY+k}, v{vT+1}, v{vY+k}")
    a.e("s_waitcnt vmcnt(1)")
    a.c("gate partial: bf16(x*g) pairs")
    a.e(f"v_lshlrev_b32 v{vT}, 16, v{vG}")
    a.e(f"v_and_b32 v{vT+1}, 0xffff0000, v{vG}")
    a.e(f"v_lshlrev_b32 v{vT+2}, 16, v{vG+1}")
    a.e(f"v_and_b32 v{vT+3}, 0xffff0000, v{vG+1}")
    a.e(f"v_mul_f32 v{vT}, v{vT}, v{vT+2}")
    a.e(f"v_mul_f32 v{vT+1}, v{vT+1}, v{vT+3}")
    a.e(f"v_cvt_pk_bf16_f32 v{vT}, v{vT}, v{vT+1}")
    a.e(f"v_lshlrev_b32 v{vT+1}, 16, v{vT}")
    a.e(f"v_and_b32 v{vT}, 0xffff0000, v{vT}")
    a.e(f"v_add_f32 v{vG}, v{vT}, v{vT+1}")
    a.c("reduce: y4,z4 over lane bits 2..5 ; gate over all lanes")
    a.e("s_nop 1")
    for k in range(8):
        a.e(f"v_add_f32_dpp v{vY+k}, v{vY+k}, v{vY+k} row_ror:4 row_mask:0xf bank_mask:0xf")
    a.e(f"v_add_f32_dpp v{vG}, v{vG}, v{vG} quad_perm:[1,0,3,2] row_mask:0xf bank_mask:0xf")
    for k in range(8):
        a.e(f"v_add_f32_dpp v{vY+k}, v{vY+k}, v{vY+k} row_ror:8 row_mask:0xf bank_mask:0xf")
    a.e(f"v_add_f32_dpp v{vG}, v{vG}, v{vG} quad_perm:[2,3,0,1] row_mask:0xf bank_mask:0xf")
    a.e("s_nop 1")
    a.e(f"v_add_f32_dpp v{vG}, v{vG}, v{vG} row_ror:4 row_mask:0xf bank_mask:0xf")
    a.e("s_nop 1")
    a.e(f"v_add_f32_dpp v{vG}, v{vG}, v{vG} row_ror:8 row_mask:0xf bank_mask:0xf")
    for k in range(4):
        a.e(f"v_permlane32_swap_b32 v{vY+k}, v{vY+4+k}")
    a.e("s_nop 1")
    for k in range(4):
        a.e(f"v_add_f32 v{vY+k}, v{vY+k}, v{vY+4+k}")
    a.e("s_nop 1")
    for k in range(2):
        a.e(f"v_permlane16_swap_b32 v{vY+k}, v{vY+2+k}")
    a.e("s_nop 1")
    for k in range(2):
        a.e(f"v_add_f32 v{vY+k}, v{vY+k}, v{vY+2+k}")
    a.e(f"v_mov_b32 v{vT}, v{vG}")
    a.e(f"v_mov_b32 v{vT+1}, v{vG}")
    a.e("s_nop 1")
    a.e(f"v_permlane32_swap_b32 v{vT}, v{vT+1}")
    a.e("s_nop 1")
    a.e(f"v_add_f32 v{vT}, v{vT}, v{vT+1}")
    a.e(f"v_mov_b32 v{vT+1}, v{vT}")
    a.e("s_nop 1")
    a.e(f"v_permlane16_swap_b32 v{vT}, v{vT+1}")
    a.e("s_nop 1")
    a.e(f"v_add_f32 v{vG}, v{vT}, v{vT+1}")
    a.e(f"v_and_b32 v{vT}, 3, v0")
    a.e(f"v_lshlrev_b32 v{vT}, 4, v{vT}")
    a.e(f"v_bfe_u32 v{vT+1}, v0, 4, 1")
    a.e(f"v_lshl_add_u32 v{vT}, v{vT+1}, 3, v{vT}")
    a.e(f"v_bfe_u32 v{vT+1}, v0, 5, 1")
    a.e(f"v_lshl_add_u32 v{vT}, v{vT+1}, 6, v{vT}")
    a.e(f"s_lshl_b32 s{sT0}, s{sW}, 7")
    a.e(f"v_add_u32 v{vT}, s{sT0}, v{vT}")
    a.e(f"ds_write_b64 v{vT}, {vr(vY,2)}")
    a.e(f"s_lshl_b32 s{sT0}, s{sW}, 2")
    a.e(f"v_mov_b32 v{vT}, s{sT0}")
    a.e(f"ds_write_b32 v{vT}, v{vG} offset:512")
    a.e("s_waitcnt lgkmcnt(0)")
    a.e("s_barrier")
    a.e(f"v_cmp_gt_u32 vcc, 16, v0")
    a.e("s_and_saveexec_b64 s[62:63], vcc")
    a.e("s_cbranch_execz L_k2_end")
    a.e(f"v_lshlrev_b32 v{vT}, 2, v0")
    a.e(f"v_mov_b32 v{vT+1}, 0")
    for w_ in range(4):
        a.e(f"ds_read_b32 v{vY+w_}, v{vT} offset:{w_*128}")
        a.e(f"ds_read_b32 v{vZ4+w_}, v{vT} offset:{w_*128+64}")
    a.e(f"ds_read_b128 {vr(vML,4)}, v{vT+1} offset:512")
    a.e("s_waitcnt lgkmcnt(0)")
    for base in (vY, vZ4, vML):
        a.e(f"v_add_f32 v{base}, v{base}, v{base+1}")
        a.e(f"v_add_f32 v{base+2}, v{base+2}, v{base+3}")
        a.e(f"v_add_f32 v{base}, v{base}, v{base+2}")
    def rbf(reg):
        a.e(f"v_cvt_pk_bf16_f32 v{reg}, v{reg}, v{reg}")
        a.e(f"v_lshlrev_b32 v{reg}, 16, v{reg}")
    a.c("g = bf16(sigmoid(bf16(sum)))")
    rbf(vML)
    a.e(f"v_mul_f32 v{vT}, 0xbfb8aa3b, v{vML}")
    a.e(f"v_exp_f32 v{vT}, v{vT}")
    a.e("s_nop 0")
    a.e(f"v_add_f32 v{vT}, 1.0, v{vT}")
    a.e(f"v_rcp_f32 v{vT}, v{vT}")
    a.e("s_nop 0")
    rbf(vT)
    a.e(f"v_sub_f32 v{vT+1}, 1.0, v{vT}")
    rbf(vT+1)
    rbf(vY)
    rbf(vZ4)
    a.e("s_waitcnt vmcnt(0)")
    a.e(f"v_lshlrev_b32 v{vG+2}, 16, v{vG+2}")
    a.e(f"v_add_f32 v{vZ4}, v{vZ4}, v{vG+2}")
    rbf(vZ4)
    a.e(f"v_mul_f32 v{vY}, v{vT}, v{vY}")
    rbf(vY)
    a.e(f"v_mul_f32 v{vZ4}, v{vT+1}, v{vZ4}")
    rbf(vZ4)
    a.e(f"v_add_f32 v{vY}, v{vY}, v{vZ4}")
    a.e(f"v_cvt_pk_bf16_f32 v{vY}, v{vY}, v{vY}")
    a.e(f"v_lshlrev_b32 v{vT}, 1, v0")
    a.e(f"buffer_store_short v{vY}, v{vT}, {sr(sOUT,4)}, 0 offen")
    a.label("L_k2_end")
    a.e("s_endpgm")
    return dict(name="final_kernel", vgpr=32, sgpr=72)

def kd(k):
    v = k["vgpr"]
    acc = (v + 3) // 4 * 4
    return f""".amdhsa_kernel {k['name']}
  .amdhsa_next_free_vgpr {v}
  .amdhsa_next_free_sgpr {k['sgpr']}
  .amdhsa_accum_offset {acc}
  .amdhsa_group_segment_fixed_size 0
  .amdhsa_kernarg_size 112
  .amdhsa_user_sgpr_count 2
  .amdhsa_user_sgpr_kernarg_segment_ptr 1
  .amdhsa_system_sgpr_workgroup_id_x 1
  .amdhsa_float_denorm_mode_32 3
.end_amdhsa_kernel
"""

def main():
    ap = argparse.ArgumentParser()
    ap.add_argument("-o", default="-")
    ap.add_argument("--policy", default="")
    ap.add_argument("--wpolicy", default="")
    ap.add_argument("--stamps", action="store_true")
    opt = ap.parse_args()
    a = Asm()
    k1 = gen_k1(a, opt)
    b = Asm()
    k2 = gen_k2(b, opt)
    out = HEADER
    out += f"; @launch kernel={NAME}_kernel grid=(256,1,1) block=(512,1,1) lds=32768\n"
    out += f"; @launch kernel=final_kernel grid=(128,1,1) block=(256,1,1) lds=1024\n"
    out += '.amdgcn_target "amdgcn-amd-amdhsa--gfx950"\n.text\n'
    out += a.text() + b.text()
    out += '.section .rodata,"a"\n.p2align 6\n' + kd(k1) + ".p2align 6\n" + kd(k2)
    if opt.o == "-":
        sys.stdout.write(out)
    else:
        open(opt.o, "w").write(out)

if __name__ == "__main__":
    main()
```

```python
import sys, argparse, struct

NAME = "gated_mix__mha_block_cached__dense_activation_squared_relu__decode"
HEADER = """; Kernarg layout (112 bytes, ptrs only, base s[0:1]):
"""

class Asm:
    def __init__(self):
        self.lines = []
        self.vmq = []
    def e(self, s): self.lines.append("    " + s)
    def c(self, s): self.lines.append("    ; " + s)
    def label(self, l): self.lines.append(l + ":")
    def raw(self, s): self.lines.append(s)
    def vmem(self, s, tag):
        self.e(s); self.vmq.append(tag)
    def wait_vm(self, tag):
        idx = max(i for i, t in enumerate(self.vmq) if t == tag)
        n = len(self.vmq) - idx - 1
        assert n <= 63, n
        self.e(f"s_waitcnt vmcnt({n})")
        self.vmq = self.vmq[idx + 1:]
    def wait_vm_all(self):
        self.e("s_waitcnt vmcnt(0)"); self.vmq = []
    def text(self): return "\n".join(self.lines) + "\n"

def vr(b, n): return f"v[{b}:{b+n-1}]"
def sr(b, n): return f"s[{b}:{b+n-1}]"
def f32bits(x): return struct.unpack("<I", struct.pack("<f", x))[0]
SCALE_LOG2E = 0.08838834764831845 * 1.4426950408889634
FULL = "row_mask:0xf bank_mask:0xf"

WS_Y = 0
WS_Z = 512 * 1024
WS_ML = 1024 * 1024
WS_SIZE = WS_ML + 2048
WS_STAMP = 2 * 1024 * 1024

sK, sV, sWQ, sWO, sX, sW1, sW2, sWS = 24, 28, 32, 36, 40, 44, 48, 52
sH, sB, sS, sW, sU, sIDX = 56, 57, 58, 59, 60, 61
sT0, sT1, sT2, sT3 = 62, 63, 64, 65
sEX = 66
sDBG = 68
sPLO, sPHI, sC = 72, 73, 74
sCNT = 75
sPAR = 76
sOUT = 28
sST = 82

def srd(a, d, plo, off_sgpr, nrec):
    if off_sgpr is None:
        a.e(f"s_mov_b32 s{d}, s{plo}")
        a.e(f"s_and_b32 s{d+1}, s{plo+1}, 0xffff")
    else:
        a.e(f"s_add_u32 s{d}, s{plo}, s{off_sgpr}")
        a.e(f"s_addc_u32 s{d+1}, s{plo+1}, 0")
        a.e(f"s_and_b32 s{d+1}, s{d+1}, 0xffff")
    a.e(f"s_mov_b32 s{d+2}, {nrec}")
    a.e(f"s_mov_b32 s{d+3}, 0x00020000")

def reduce_scatter8(a, base):
    for k in range(4):
        a.e(f"v_permlane32_swap_b32 v{base+k}, v{base+4+k}")
    a.e("s_nop 1")
    for k in range(4):
        a.e(f"v_add_f32 v{base+k}, v{base+k}, v{base+4+k}")
    a.e("s_nop 1")
    for k in range(2):
        a.e(f"v_permlane16_swap_b32 v{base+k}, v{base+2+k}")
    a.e("s_nop 1")
    for k in range(2):
        a.e(f"v_add_f32 v{base+k}, v{base+k}, v{base+2+k}")

def allred_rows(a, reg, t0, t1, op):
    a.e(f"v_mov_b32 v{t0}, v{reg}")
    a.e(f"v_mov_b32 v{t1}, v{reg}")
    a.e("s_nop 1")
    a.e(f"v_permlane32_swap_b32 v{t0}, v{t1}")
    a.e("s_nop 1")
    a.e(f"{op} v{t0}, v{t0}, v{t1}")
    a.e(f"v_mov_b32 v{t1}, v{t0}")
    a.e("s_nop 1")
    a.e(f"v_permlane16_swap_b32 v{t0}, v{t1}")
    a.e("s_nop 1")
    a.e(f"{op} v{reg}, v{t0}, v{t1}")

def gen(opt):
    a = Asm()
    pol = (" " + opt.policy) if opt.policy else ""
    wpol = (" " + opt.wpolicy) if opt.wpolicy else ""
    LA, P0 = opt.la, opt.p0
    assert LA <= P0 <= 8
    def stamp(i):
        if opt.stamps:
            a.e(f"s_memrealtime {sr(sST+2*i,2)}")
    def dump_stamps(vT, vS, vLane, n):
        a.e("s_waitcnt lgkmcnt(0)")
        a.e(f"s_mov_b32 s{sWS+2}, 0x1000000")
        a.e(f"s_lshl_b32 s{sT0}, s2, 4")
        a.e(f"s_add_u32 s{sT0}, s{sT0}, s{sW}")
        a.e(f"s_lshl_b32 s{sT0}, s{sT0}, 7")
        a.e(f"s_add_u32 s{sT0}, s{sT0}, {WS_STAMP}")
        a.e(f"v_cmp_eq_u32 vcc, 0, v{vLane}")
        a.e(f"s_and_saveexec_b64 {sr(sEX,2)}, vcc")
        for i in range(n):
            a.e(f"v_mov_b32 v{vT}, {i*8}")
            a.e(f"v_mov_b32 v{vS}, s{sST+2*i}")
            a.e(f"v_mov_b32 v{vS+1}, s{sST+2*i+1}")
            a.e(f"buffer_store_dwordx2 {vr(vS,2)}, v{vT}, {sr(sWS,4)}, s{sT0} offen")
            a.e("s_nop 1")

    vLane, vK0, vK1 = 1, 2, 3
    vQ, vO, vS = 4, 8, 16
    vM, vL, vPlo, vPhi, vAl = 24, 25, 26, 27, 28
    vT = 29
    vL16, vA0, vA1 = 34, 35, 36
    vKb, vVb, vWQ = 40, 72, 104
    NV = 168
    LDS_QP, LDS_OP, LDS_ML, LDS_YP = 0, 4096, 8192, 8448
    LDS_SIZE = LDS_YP + 16384

    K1 = f"{NAME}_kernel"
    a.raw(f".globl {K1}")
    a.raw(".p2align 8")
    a.raw(f".type {K1},@function")
    a.label(K1)
    a.e("s_cmp_ge_u32 s2, 256")
    a.e("s_cbranch_scc1 L_end")
    stamp(0)
    a.e("s_load_dwordx16 s[4:19], s[0:1], 0")
    a.e("s_load_dwordx2 s[20:21], s[0:1], 64")
    a.e("s_load_dwordx2 s[22:23], s[0:1], 104")
    a.c("workgroup id -> head, batch, key half")
    a.e(f"v_lshrrev_b32 v{vT}, 6, v0")
    a.e(f"s_and_b32 s{sT0}, s2, 7")
    a.e(f"s_lshr_b32 s{sT1}, s2, 3")
    a.e(f"v_readfirstlane_b32 s{sW}, v{vT}")
    a.e(f"s_lshr_b32 s{sT2}, s{sT1}, 3")
    a.e(f"s_lshl_b32 s{sH}, s{sT0}, 2")
    a.e(f"s_add_u32 s{sH}, s{sH}, s{sT2}")
    a.e(f"s_and_b32 s{sT1}, s{sT1}, 7")
    a.e(f"s_lshr_b32 s{sB}, s{sT1}, 1")
    a.e(f"s_and_b32 s{sS}, s{sT1}, 1")
    a.e(f"s_lshl_b32 s{sU}, s{sH}, 1")
    a.e(f"s_add_u32 s{sU}, s{sU}, s{sS}")
    a.e(f"s_lshl_b32 s{sIDX}, s{sB}, 6")
    a.e(f"s_add_u32 s{sIDX}, s{sIDX}, s{sU}")
    a.e(f"v_and_b32 v{vLane}, 63, v0")
    a.e(f"s_mov_b32 s{sPLO}, 0x05040100")
    a.e(f"s_mov_b32 s{sPHI}, 0x07060302")
    a.e(f"s_cmp_eq_u32 s{sW}, 8")
    a.e("s_cbranch_scc1 L_aux")

    if opt.rot:
        a.e(f"s_add_u32 s{sT3}, s{sW}, s{sT1}")
        a.e(f"s_and_b32 s{sT3}, s{sT3}, 7")
    else:
        a.e(f"s_mov_b32 s{sT3}, s{sW}")
    a.e(f"v_lshrrev_b32 v{vT}, 4, v{vLane}")
    a.e(f"v_and_b32 v{vT+1}, 15, v{vLane}")
    a.e(f"v_lshlrev_b32 v{vT+2}, 5, v{vT}")
    a.e(f"v_lshlrev_b32 v{vT+3}, 17, v{vT}")
    a.e(f"v_lshl_add_u32 v{vT+3}, v{vT+1}, 4, v{vT+3}")
    a.e(f"v_lshlrev_b32 v{vA0}, 3, v{vT}")
    a.e(f"v_lshl_add_u32 v{vA0}, v{vT+1}, 5, v{vA0}")
    a.e(f"v_lshlrev_b32 v{vL16}, 4, v{vLane}")
    a.e(f"s_lshl_b32 s{sT0}, s{sW}, 13")
    a.e(f"v_add_u32 v{vK0}, s{sT0}, v{vL16}")
    a.e(f"v_add_u32 v{vK1}, 0x1000, v{vK0}")
    a.e(f"s_lshl_b32 s{sT1}, s{sB}, 10")
    a.e(f"s_lshl_b32 s{sT2}, s{sT3}, 7")
    a.e(f"s_add_u32 s{sT1}, s{sT1}, s{sT2}")
    a.e(f"s_lshl_b32 s{sT2}, s{sT3}, 19")
    a.e(f"s_lshl_b32 s{sT0}, s{sH}, 8")
    a.e("s_waitcnt lgkmcnt(0)")
    srd(a, sX, 4, None, "0x1000")
    srd(a, sWQ, 10, sT0, "0x400000")
    a.e(f"s_sub_u32 s{sWQ+2}, s{sWQ+2}, s{sT0}")
    vXQ = vS
    a.vmem(f"buffer_load_dwordx4 {vr(vXQ,4)}, v{vT+2}, {sr(sX,4)}, s{sT1} offen", "xq")
    a.vmem(f"buffer_load_dwordx4 {vr(vXQ+4,4)}, v{vT+2}, {sr(sX,4)}, s{sT1} offen offset:16", "xq")
    for j in range(16):
        a.vmem(f"buffer_load_dwordx4 {vr(vWQ+4*j,4)}, v{vT+3}, {sr(sWQ,4)}, s{sT2} offen{wpol}", f"wq{j}")
        if j < 15:
            a.e(f"s_add_u32 s{sT2}, s{sT2}, 0x2000")
    a.e(f"s_lshl_b32 s{sT0}, s{sB}, 5")
    a.e(f"s_add_u32 s{sT0}, s{sT0}, s{sH}")
    a.e(f"s_lshl_b32 s{sT0}, s{sT0}, 1")
    a.e(f"s_add_u32 s{sT0}, s{sT0}, s{sS}")
    a.e(f"s_lshl_b32 s{sT0}, s{sT0}, 20")
    srd(a, sK, 6, sT0, "0x100000")
    srd(a, sV, 8, sT0, "0x100000")
    def slot_load(n):
        j = n & 7
        base, s_ = (vKb, sK) if n < 8 else (vVb, sV)
        return f"buffer_load_dwordx4 {vr(base+4*j,4)}, v{vK0+(j>>2)}, {sr(s_,4)}, 0 offen offset:{(j&3)*1024}{pol}"
    for n in range(P0):
        a.vmem(slot_load(n), f"t0n{n}")
    a.e(f"s_lshl_b32 s{sT0}, s{sH}, 17")
    a.e(f"s_lshl_b32 s{sT2}, s{sW}, 14")
    a.e(f"s_add_u32 s{sT0}, s{sT0}, s{sT2}")
    srd(a, sWO, 12, sT0, "0x4000")
    srd(a, sWS, 22, None, f"0x{WS_SIZE:x}")
    a.e(f"s_mov_b32 s{sC}, 0x{f32bits(SCALE_LOG2E):08x}")
    a.e(f"s_mov_b32 s{sPAR}, 0xaaaaaaaa")
    a.e(f"s_mov_b32 s{sPAR+1}, 0xaaaaaaaa")
    for k in range(8):
        a.e(f"v_mov_b32 v{vO+k}, 0")
    stamp(1)
    a.c("q partial sums over this wave's 64 rows of wq")
    for p in range(8):
        a.wait_vm(f"wq{2*p+1}")
        for d in range(4):
            r0 = vWQ + 8*p + d
            r1 = vWQ + 8*p + 4 + d
            a.e(f"v_perm_b32 v{vT}, v{r1}, v{r0}, s{sPLO}")
            a.e(f"v_perm_b32 v{vT+1}, v{r1}, v{r0}, s{sPHI}")
            a.e(f"v_dot2c_f32_bf16 v{vO+2*d}, v{vT}, v{vXQ+p}")
            a.e(f"v_dot2c_f32_bf16 v{vO+2*d+1}, v{vT+1}, v{vXQ+p}")
    a.e(f"s_lshl_b32 s{sT0}, s{sW}, 9")
    a.e(f"v_add_u32 v{vT+2}, s{sT0}, v{vA0}")
    a.e("s_nop 0")
    reduce_scatter8(a, vO)
    a.e(f"ds_write_b64 v{vT+2}, {vr(vO,2)} offset:{LDS_QP}")
    stamp(2)
    a.e("s_waitcnt lgkmcnt(0)")
    a.e("s_barrier")
    a.c("q: lane (g,i) sums columns 8i+2g, 8i+2g+1 over the 8 waves, then the rows exchange their pairs")
    for x in range(8):
        a.e(f"ds_read_b64 {vr(vS+ (2*x if x < 4 else 0), 2) if x < 4 else vr(vO+2*(x-4), 2)}, v{vA0} offset:{LDS_QP + x*512}")
    a.e("s_waitcnt lgkmcnt(0)")
    for k in range(2):
        a.e(f"v_add_f32 v{vS+k}, v{vS+k}, v{vS+2+k}")
        a.e(f"v_add_f32 v{vS+4+k}, v{vS+4+k}, v{vS+6+k}")
        a.e(f"v_add_f32 v{vO+k}, v{vO+k}, v{vO+2+k}")
        a.e(f"v_add_f32 v{vO+4+k}, v{vO+4+k}, v{vO+6+k}")
    for k in range(2):
        a.e(f"v_add_f32 v{vS+k}, v{vS+k}, v{vS+4+k}")
        a.e(f"v_add_f32 v{vO+k}, v{vO+k}, v{vO+4+k}")
    for k in range(2):
        a.e(f"v_add_f32 v{vS+k}, v{vS+k}, v{vO+k}")
    a.e(f"v_cvt_pk_bf16_f32 v{vQ}, v{vS}, v{vS+1}")
    a.e(f"v_mov_b32 v{vQ+1}, v{vQ}")
    a.e("s_nop 1")
    a.e(f"v_permlane16_swap_b32 v{vQ}, v{vQ+1}")
    a.e("s_nop 1")
    a.e(f"v_mov_b32 v{vQ+2}, v{vQ}")
    a.e(f"v_mov_b32 v{vQ+3}, v{vQ+1}")
    a.e("s_nop 1")
    a.e(f"v_permlane32_swap_b32 v{vQ}, v{vQ+2}")
    a.e(f"v_permlane32_swap_b32 v{vQ+1}, v{vQ+3}")
    for k in range(8):
        a.e(f"v_mov_b32 v{vO+k}, 0")
    a.e(f"v_mov_b32 v{vM}, 0xff7fffff")
    a.e(f"v_mov_b32 v{vL}, 0")
    stamp(3)

    def pos(j): return 4*(j >> 1) + (j & 1)
    NT = 16
    issued = P0
    def issue_upto(g):
        nonlocal issued
        while issued <= g and issued < NT * 16:
            t, n = divmod(issued, 16)
            if n == 0:
                a.e(f"v_add_u32 v{vK0}, 0x10000, v{vK0}")
                a.e(f"v_add_u32 v{vK1}, 0x10000, v{vK1}")
            a.vmem(slot_load(n), f"t{t}n{n}")
            issued += 1
    def wo_load(j):
        if (j & 3) == 0 or True:
            a.e(f"s_mov_b32 s{sT2}, {(j>>2)*4096}")
        a.vmem(f"buffer_load_dwordx4 {vr(vWQ+4*j,4)}, v{vL16}, {sr(sWO,4)}, s{sT2} offen offset:{(j&3)*1024}{wpol}", f"wo{j}")
    def wo_perm(p):
        for d in range(4):
            r0 = vWQ + 8*p + d
            r1 = vWQ + 8*p + 4 + d
            a.e(f"v_perm_b32 v{vT}, v{r1}, v{r0}, s{sPLO}")
            a.e(f"v_perm_b32 v{r1}, v{r1}, v{r0}, s{sPHI}")
            a.e(f"v_mov_b32 v{r0}, v{vT}")
    for t in range(NT):
        a.c(f"tile {t}")
        if t == 1: stamp(4)
        for j in range(8):
            a.wait_vm(f"t{t}n{j}")
            issue_upto(16*t + j + LA)
            if j == 0 and t < 8 and opt.wo:
                wo_load(2*t); wo_load(2*t+1)
            a.e(f"v_dot2_f32_bf16 v{vS+j}, v{vKb+4*j}, v{vQ}, 0")
            for d in range(1, 4):
                a.e(f"v_dot2_f32_bf16 v{vS+j}, v{vKb+4*j+d}, v{vQ+d}, v{vS+j}")
        a.e("s_nop 2")
        for j in range(4):
            a.e(f"v_add_f32_dpp v{vS+j}, v{vS+j}, v{vS+j} row_ror:8 row_mask:0xf bank_mask:0x3")
        for j in range(4):
            a.e(f"v_add_f32_dpp v{vS+j}, v{vS+j+4}, v{vS+j+4} row_ror:8 row_mask:0xf bank_mask:0xc")
        for j in range(2):
            a.e(f"v_add_f32_dpp v{vS+j}, v{vS+j}, v{vS+j} row_half_mirror row_mask:0xf bank_mask:0x5")
        for j in range(2):
            a.e(f"v_add_f32_dpp v{vS+j}, v{vS+j+2}, v{vS+j+2} row_half_mirror row_mask:0xf bank_mask:0xa")
        a.e("s_nop 0")
        for j in range(2):
            a.e(f"v_add_f32_dpp v{vS+j}, v{vS+j}, v{vS+j} quad_perm:[1,0,3,2] {FULL}")
        a.e("s_nop 0")
        a.e(f"v_cndmask_b32 v{vT}, v{vS}, v{vS+1}, {sr(sPAR,2)}")
        a.e("s_nop 1")
        a.e(f"v_add_f32_dpp v{vT}, v{vT}, v{vT} quad_perm:[2,3,0,1] {FULL}")
        a.e(f"v_mul_f32 v{vT}, s{sC}, v{vT}")
        a.e("s_nop 1")
        a.e(f"v_max_f32_dpp v{vT+1}, v{vT}, v{vT} quad_perm:[1,0,3,2] {FULL}")
        a.e("s_nop 1")
        a.e(f"v_max_f32_dpp v{vT+1}, v{vT+1}, v{vT+1} row_ror:4 {FULL}")
        a.e("s_nop 1")
        a.e(f"v_max_f32_dpp v{vT+1}, v{vT+1}, v{vT+1} row_ror:8 {FULL}")
        a.e(f"v_max_f32 v{vT+1}, v{vT+1}, v{vM}")
        a.e(f"v_sub_f32 v{vAl}, v{vM}, v{vT+1}")
        a.e(f"v_sub_f32 v{vT}, v{vT}, v{vT+1}")
        a.e(f"v_exp_f32 v{vAl}, v{vAl}")
        a.e(f"v_exp_f32 v{vT}, v{vT}")
        a.e(f"v_mov_b32 v{vM}, v{vT+1}")
        a.e(f"v_cvt_pk_bf16_f32 v{vPlo}, v{vT}, 0")
        a.e(f"v_cvt_pk_bf16_f32 v{vPhi}, 0, v{vT}")
        a.e(f"v_fma_f32 v{vL}, v{vL}, v{vAl}, v{vT}")
        for k in range(8):
            a.e(f"v_mul_f32 v{vO+k}, v{vAl}, v{vO+k}")
        for j in range(8):
            a.wait_vm(f"t{t}n{8+j}")
            issue_upto(16*t + 8 + j + LA)
            for d in range(4):
                a.e(f"v_dot2c_f32_bf16_dpp v{vO+2*d}, v{vPlo}, v{vVb+4*j+d} row_newbcast:{pos(j)} {FULL}")
                a.e(f"v_dot2c_f32_bf16_dpp v{vO+2*d+1}, v{vPhi}, v{vVb+4*j+d} row_newbcast:{pos(j)} {FULL}")
        if opt.wo and 1 <= t <= 8:
            wo_perm(t - 1)
    stamp(5)
    a.c("in-wave combine of the 4 lane rows")
    a.e(f"v_mov_b32 v{vT+2}, v{vM}")
    allred_rows(a, vT+2, vT, vT+1, "v_max_f32")
    a.e(f"v_sub_f32 v{vAl}, v{vM}, v{vT+2}")
    a.e(f"v_exp_f32 v{vAl}, v{vAl}")
    a.e(f"v_mov_b32 v{vM}, v{vT+2}")
    a.e(f"v_mul_f32 v{vL}, v{vAl}, v{vL}")
    for k in range(8):
        a.e(f"v_mul_f32 v{vO+k}, v{vAl}, v{vO+k}")
    a.e(f"v_add_f32_dpp v{vL}, v{vL}, v{vL} quad_perm:[1,0,3,2] {FULL}")
    a.e(f"s_lshl_b32 s{sT0}, s{sW}, 9")
    a.e(f"v_add_u32 v{vT+2}, s{sT0}, v{vA0}")
    a.e(f"v_add_f32_dpp v{vL}, v{vL}, v{vL} quad_perm:[2,3,0,1] {FULL}")
    reduce_scatter8(a, vO)
    a.e(f"ds_write_b64 v{vT+2}, {vr(vO,2)} offset:{LDS_OP}")
    a.e(f"v_add_f32_dpp v{vL}, v{vL}, v{vL} row_ror:4 {FULL}")
    a.e(f"s_lshl_b32 s{sT0}, s{sW}, 3")
    a.e(f"v_mov_b32 v{vT+2}, s{sT0}")
    a.e(f"v_add_f32_dpp v{vL}, v{vL}, v{vL} row_ror:8 {FULL}")
    allred_rows(a, vL, vT, vT+1, "v_add_f32")
    a.e(f"v_mul_f32 v{vL}, 0.5, v{vL}")
    a.e(f"ds_write_b64 v{vT+2}, {vr(vM,2)} offset:{LDS_ML}")
    a.e("s_waitcnt lgkmcnt(0)")
    a.e("s_barrier")
    stamp(6)
    a.c("cross-wave combine: lane = (w' = l>>3, p = l&7) reads dims 16w+2p, +1 of wave w'")
    a.e(f"v_lshrrev_b32 v{vT}, 3, v{vLane}")
    a.e(f"v_and_b32 v{vT+1}, 7, v{vLane}")
    a.e(f"v_lshlrev_b32 v{vT+1}, 3, v{vT+1}")
    a.e(f"v_lshl_add_u32 v{vT+1}, v{vT}, 9, v{vT+1}")
    a.e(f"s_lshl_b32 s{sT0}, s{sW}, 6")
    a.e(f"v_add_u32 v{vT+1}, s{sT0}, v{vT+1}")
    a.e(f"v_lshlrev_b32 v{vT}, 3, v{vT}")
    a.e(f"ds_read_b64 {vr(vM,2)}, v{vT} offset:{LDS_ML}")
    a.e(f"ds_read_b64 {vr(vO,2)}, v{vT+1} offset:{LDS_OP}")
    for k in range(8):
        a.e(f"v_mov_b32 v{vS+k}, 0")
    a.e("s_waitcnt lgkmcnt(1)")
    a.e(f"v_max_f32_dpp v{vAl}, v{vM}, v{vM} row_ror:8 {FULL}")
    allred_rows(a, vAl, vT, vT+1, "v_max_f32")
    a.e(f"v_sub_f32 v{vT+2}, v{vM}, v{vAl}")
    a.e(f"v_exp_f32 v{vT+2}, v{vT+2}")
    a.e(f"v_mov_b32 v{vM}, v{vAl}")
    a.e("s_waitcnt lgkmcnt(0)")
    a.e(f"v_mul_f32 v{vO}, v{vT+2}, v{vO}")
    a.e(f"v_mul_f32 v{vO+1}, v{vT+2}, v{vO+1}")
    a.e(f"v_mul_f32 v{vL}, v{vT+2}, v{vL}")
    a.e("s_nop 0")
    for r_ in (vO, vO+1, vL):
        a.e(f"v_add_f32_dpp v{r_}, v{r_}, v{r_} row_ror:8 {FULL}")
    allred_rows(a, vO, vT, vT+1, "v_add_f32")
    allred_rows(a, vO+1, vT+2, vT+3, "v_add_f32")
    a.e(f"v_cvt_pk_bf16_f32 v{vPlo}, v{vO}, v{vO+1}")
    a.c("projection through this wave's 16 rows of wo (pre-permuted into row pairs)")
    a.e(f"s_lshl_b32 s{sT0}, s{sW}, 11")
    a.e(f"v_lshlrev_b32 v{vA1}, 5, v{vLane}")
    a.e(f"v_add_u32 v{vA1}, s{sT0}, v{vA1}")
    for p in range(8):
        for d in range(4):
            r0 = vWQ + 8*p + d
            r1 = vWQ + 8*p + 4 + d
            a.e(f"v_dot2c_f32_bf16_dpp v{vS+2*d}, v{vPlo}, v{r0} row_newbcast:{p} {FULL}")
            a.e(f"v_dot2c_f32_bf16_dpp v{vS+2*d+1}, v{vPlo}, v{r1} row_newbcast:{p} {FULL}")
    allred_rows(a, vL, vT, vT+1, "v_add_f32")
    a.e(f"ds_write_b128 v{vA1}, {vr(vS,4)} offset:{LDS_YP}")
    a.e(f"ds_write_b128 v{vA1}, {vr(vS+4,4)} offset:{LDS_YP+16}")
    a.e("s_waitcnt lgkmcnt(0)")
    a.e("s_barrier")
    stamp(7)
    a.c("waves 0,1: sum the 8 partial rows (4 columns per lane) and publish")
    a.e(f"s_cmp_ge_u32 s{sW}, 2")
    a.e("s_cbranch_scc1 L_stream_done")
    a.e(f"v_lshlrev_b32 v{vT}, 4, v0")
    for x in range(8):
        a.e(f"ds_read_b128 {vr(vWQ+4*x,4)}, v{vT} offset:{LDS_YP + x*2048}")
    a.e(f"s_lshl_b32 s{sT0}, s{sIDX}, 11")
    a.e(f"s_lshl_b32 s{sT2}, s{sIDX}, 3")
    a.e(f"s_add_u32 s{sT2}, s{sT2}, {WS_ML}")
    a.e("s_waitcnt lgkmcnt(4)")
    for k in range(4):
        a.e(f"v_add_f32 v{vWQ+k}, v{vWQ+k}, v{vWQ+4+k}")
        a.e(f"v_add_f32 v{vWQ+8+k}, v{vWQ+8+k}, v{vWQ+12+k}")
    a.e("s_waitcnt lgkmcnt(0)")
    for k in range(4):
        a.e(f"v_add_f32 v{vWQ+16+k}, v{vWQ+16+k}, v{vWQ+20+k}")
        a.e(f"v_add_f32 v{vWQ+24+k}, v{vWQ+24+k}, v{vWQ+28+k}")
    for k in range(4):
        a.e(f"v_add_f32 v{vWQ+k}, v{vWQ+k}, v{vWQ+8+k}")
        a.e(f"v_add_f32 v{vWQ+16+k}, v{vWQ+16+k}, v{vWQ+24+k}")
    for k in range(4):
        a.e(f"v_add_f32 v{vWQ+k}, v{vWQ+k}, v{vWQ+16+k}")
    a.e(f"buffer_store_dwordx4 {vr(vWQ,4)}, v{vT}, {sr(sWS,4)}, s{sT0} offen sc1")
    a.e(f"v_cmp_eq_u32 vcc, 0, v0")
    a.e(f"s_and_saveexec_b64 {sr(sEX,2)}, vcc")
    a.e("s_cbranch_execz L_no_ml")
    a.e(f"v_mov_b32 v{vT+1}, 0")
    a.e(f"buffer_store_dwordx2 {vr(vM,2)}, v{vT+1}, {sr(sWS,4)}, s{sT2} offen sc1")
    a.label("L_no_ml")
    a.e(f"s_mov_b64 exec, {sr(sEX,2)}")
    a.label("L_stream_done")
    if opt.stamps:
        stamp(8)
        a.e("s_waitcnt vmcnt(0)")
        stamp(9)
        dump_stamps(vT, vS, vLane, 10)
    a.e("s_endpgm")

    a.vmq = []
    a.raw(".p2align 6")
    a.label("L_aux")
    uX = 2
    uAcc = 18
    uT = 26
    uW = 40
    uZ = 104
    uML = 112
    uG, uG1, uB2, uOff, uH2, uNeg = 116, 117, 118, 119, 120, 121
    a.e("s_waitcnt lgkmcnt(0)")
    a.e("s_load_dwordx4 s[8:11], s[0:1], 72")
    a.e("s_load_dwordx4 s[12:15], s[0:1], 88")
    a.e("s_waitcnt lgkmcnt(0)")
    srd(a, sX, 4, None, "0x1000")
    srd(a, sWS, 22, None, f"0x{WS_SIZE:x}")
    srd(a, sDBG, 14, None, "256")
    a.e("s_barrier")
    stamp(1)
    a.c("clear this workgroup's hand-off slots (y row, z row, m/l) with the 'not written' pattern")
    a.e(f"v_mov_b32 v{uT}, -1")
    a.e(f"v_mov_b32 v{uT+1}, -1")
    a.e(f"v_mov_b32 v{uT+2}, -1")
    a.e(f"v_mov_b32 v{uT+3}, -1")
    a.e(f"v_lshlrev_b32 v{uOff}, 5, v{vLane}")
    a.e(f"s_lshl_b32 s{sT0}, s{sIDX}, 11")
    a.e(f"s_add_u32 s{sT1}, s{sT0}, {WS_Z}")
    a.e(f"s_lshl_b32 s{sT2}, s{sIDX}, 3")
    a.e(f"s_add_u32 s{sT2}, s{sT2}, {WS_ML}")
    a.e(f"buffer_store_dwordx4 {vr(uT,4)}, v{uOff}, {sr(sWS,4)}, s{sT0} offen sc1")
    a.e(f"buffer_store_dwordx4 {vr(uT,4)}, v{uOff}, {sr(sWS,4)}, s{sT0} offen offset:16 sc1")
    a.e(f"buffer_store_dwordx4 {vr(uT,4)}, v{uOff}, {sr(sWS,4)}, s{sT1} offen sc1")
    a.e(f"buffer_store_dwordx4 {vr(uT,4)}, v{uOff}, {sr(sWS,4)}, s{sT1} offen offset:16 sc1")
    a.e(f"v_mov_b32 v{uT+4}, 0")
    a.e(f"v_cmp_eq_u32 vcc, 0, v{vLane}")
    a.e(f"s_and_saveexec_b64 {sr(sEX,2)}, vcc")
    a.e(f"buffer_store_dwordx2 {vr(uT,2)}, v{uT+4}, {sr(sWS,4)}, s{sT2} offen sc1")
    a.e("s_waitcnt vmcnt(0)")
    a.e(f"v_mov_b32 v{uT+5}, 1")
    a.e(f"buffer_atomic_add v{uT+5}, v{uT+4}, {sr(sDBG,4)}, 0 offen sc1")
    a.e(f"s_mov_b64 exec, {sr(sEX,2)}")
    a.c("FFN stage 1: 32 hidden units (8 per lane group c = lane&3), rows 32rr..32rr+31 with rr = lane>>2")
    a.e(f"s_min_u32 s{sT3}, s{sU}, 55")
    a.e(f"s_lshl_b32 s{sT0}, s{sT3}, 6")
    srd(a, sW1, 16, sT0, "0x1c0000")
    a.e(f"s_sub_u32 s{sW1+2}, s{sW1+2}, s{sT0}")
    a.e(f"s_lshl_b32 s{sT0}, s{sT3}, 15")
    srd(a, sW2, 20, sT0, "0x8000")
    a.e(f"s_cmp_ge_u32 s{sU}, 56")
    a.e(f"s_cselect_b32 s{sW1+2}, 0, s{sW1+2}")
    a.e(f"s_cselect_b32 s{sW2+2}, 0, s{sW2+2}")
    a.e(f"v_lshrrev_b32 v{uT}, 2, v{vLane}")
    a.e(f"v_lshlrev_b32 v{uT+1}, 6, v{uT}")
    a.e(f"s_lshl_b32 s{sT1}, s{sB}, 10")
    for x in range(4):
        a.vmem(f"buffer_load_dwordx4 {vr(uX+4*x,4)}, v{uT+1}, {sr(sX,4)}, s{sT1} offen offset:{16*x}", "xf")
    a.e(f"s_mov_b32 s{sT0}, {32*3584}")
    a.e(f"v_mul_lo_u32 v{uT+2}, s{sT0}, v{uT}")
    a.e(f"v_and_b32 v{uT+3}, 3, v{vLane}")
    a.e(f"v_lshl_add_u32 v{uT+2}, v{uT+3}, 4, v{uT+2}")
    for k in range(8):
        a.e(f"v_mov_b32 v{uAcc+k}, 0")
    WIN = opt.auxwin
    def ffn_stream(nload, mk_load, consume):
        issued_ = 0
        for p in range(nload // 2):
            while issued_ < min(nload, 2*p + 2 + WIN):
                a.vmem(mk_load(issued_), f"aux{issued_}")
                issued_ += 1
            a.wait_vm(f"aux{2*p+1}")
            consume(p)
    def w1_load(j):
        a.e(f"s_mov_b32 s{sT2}, {j*3584}")
        return f"buffer_load_dwordx4 {vr(uW+4*(j&15),4)}, v{uT+2}, {sr(sW1,4)}, s{sT2} offen{wpol}"
    def w1_use(p):
        j = (2*p) & 15
        for d in range(4):
            r0 = uW + 4*j + d; r1 = r0 + 4
            a.e(f"v_perm_b32 v{uT+4}, v{r1}, v{r0}, s{sPLO}")
            a.e(f"v_perm_b32 v{uT+5}, v{r1}, v{r0}, s{sPHI}")
            a.e(f"v_dot2c_f32_bf16 v{uAcc+2*d}, v{uT+4}, v{uX+p}")
            a.e(f"v_dot2c_f32_bf16 v{uAcc+2*d+1}, v{uT+5}, v{uX+p}")
    assert WIN + 2 <= 16
    ffn_stream(32, w1_load, w1_use)
    a.e("s_nop 2")
    reduce_scatter8(a, uAcc)
    a.e("s_nop 1")
    for k in range(2):
        a.e(f"v_add_f32_dpp v{uAcc+k}, v{uAcc+k}, v{uAcc+k} row_ror:8 {FULL}")
    a.e("s_nop 0")
    for k in range(2):
        a.e(f"v_add_f32_dpp v{uAcc+k}, v{uAcc+k}, v{uAcc+k} row_ror:4 {FULL}")
    a.c("lane (g, c): units 8c+2g, 8c+2g+1.  h = bf16(bf16(sum) + b1); h2 = bf16(relu(h)^2)")
    a.e(f"s_lshl_b32 s{sT0}, s{sT3}, 6")
    srd(a, sW1, 18, sT0, "64")
    a.e(f"v_lshrrev_b32 v{uT}, 4, v{vLane}")
    a.e(f"v_lshlrev_b32 v{uT}, 2, v{uT}")
    a.e(f"v_and_b32 v{uT+1}, 3, v{vLane}")
    a.e(f"v_lshl_add_u32 v{uT}, v{uT+1}, 4, v{uT}")
    a.vmem(f"buffer_load_dword v{uT+1}, v{uT}, {sr(sW1,4)}, 0 offen", "b1")
    a.e(f"v_cvt_pk_bf16_f32 v{uT+2}, v{uAcc}, v{uAcc+1}")
    a.e(f"v_lshlrev_b32 v{uAcc}, 16, v{uT+2}")
    a.e(f"v_and_b32 v{uAcc+1}, 0xffff0000, v{uT+2}")
    a.wait_vm("b1")
    a.e(f"v_lshlrev_b32 v{uT+2}, 16, v{uT+1}")
    a.e(f"v_and_b32 v{uT+3}, 0xffff0000, v{uT+1}")
    a.e(f"v_add_f32 v{uAcc}, v{uAcc}, v{uT+2}")
    a.e(f"v_add_f32 v{uAcc+1}, v{uAcc+1}, v{uT+3}")
    a.e(f"v_cvt_pk_bf16_f32 v{uT+2}, v{uAcc}, v{uAcc+1}")
    a.e(f"v_lshlrev_b32 v{uAcc}, 16, v{uT+2}")
    a.e(f"v_and_b32 v{uAcc+1}, 0xffff0000, v{uT+2}")
    a.e(f"v_max_f32 v{uAcc}, 0, v{uAcc}")
    a.e(f"v_max_f32 v{uAcc+1}, 0, v{uAcc+1}")
    a.e(f"v_mul_f32 v{uAcc}, v{uAcc}, v{uAcc}")
    a.e(f"v_mul_f32 v{uAcc+1}, v{uAcc+1}, v{uAcc+1}")
    a.e(f"v_cvt_pk_bf16_f32 v{uH2}, v{uAcc}, v{uAcc+1}")
    a.c("FFN stage 2: rows 32u..32u+31 of w2, lane = 8 columns")
    a.e(f"v_lshlrev_b32 v{uT+2}, 4, v{vLane}")
    for k in range(8):
        a.e(f"v_mov_b32 v{uAcc+k}, 0")
    def w2_load(j):
        a.e(f"s_mov_b32 s{sT2}, {(j>>2)*4096}")
        return f"buffer_load_dwordx4 {vr(uW+4*(j&15),4)}, v{uT+2}, {sr(sW2,4)}, s{sT2} offen offset:{(j&3)*1024}{wpol}"
    def w2_use(p):
        c_, g_ = p >> 2, p & 3
        a.e(f"v_readlane_b32 s{sT0}, v{uH2}, {16*g_ + c_}")
        j = (2*p) & 15
        for d in range(4):
            r0 = uW + 4*j + d; r1 = r0 + 4
            a.e(f"v_perm_b32 v{uT+4}, v{r1}, v{r0}, s{sPLO}")
            a.e(f"v_perm_b32 v{uT+5}, v{r1}, v{r0}, s{sPHI}")
            a.e(f"v_dot2c_f32_bf16 v{uAcc+2*d}, s{sT0}, v{uT+4}")
            a.e(f"v_dot2c_f32_bf16 v{uAcc+2*d+1}, s{sT0}, v{uT+5}")
    ffn_stream(32, w2_load, w2_use)
    a.e(f"s_lshl_b32 s{sT0}, s{sIDX}, 11")
    a.e(f"s_add_u32 s{sT1}, s{sT0}, {WS_Z}")
    a.e("s_nop 1")
    a.e(f"buffer_store_dwordx4 {vr(uAcc,4)}, v{uOff}, {sr(sWS,4)}, s{sT1} offen sc1")
    a.e(f"buffer_store_dwordx4 {vr(uAcc+4,4)}, v{uOff}, {sr(sWS,4)}, s{sT1} offen offset:16 sc1")
    stamp(2)
    a.c("gate: g = bf16(sigmoid(bf16(sum bf16(x*w))))")
    a.e(f"v_lshlrev_b32 v{uT}, 4, v{vLane}")
    srd(a, sW1, 10, None, "1024")
    a.e(f"s_lshl_b32 s{sT1}, s{sB}, 10")
    a.e(f"buffer_load_dwordx4 {vr(uW,4)}, v{uT}, {sr(sX,4)}, s{sT1} offen")
    a.e(f"buffer_load_dwordx4 {vr(uW+4,4)}, v{uT}, {sr(sW1,4)}, 0 offen")
    a.c("b2 of this lane's output column: column = 2g + (i >= 8)")
    a.e(f"s_lshl_b32 s{sT0}, s{sU}, 4")
    srd(a, sW2, 8, sT0, "16")
    a.e(f"v_lshrrev_b32 v{uT+1}, 4, v{vLane}")
    a.e(f"v_lshlrev_b32 v{uT+1}, 2, v{uT+1}")
    a.e(f"v_bfe_u32 v{uT+2}, v{vLane}, 3, 1")
    a.e(f"v_lshl_add_u32 v{uNeg}, v{uT+2}, 1, v{uT+1}")
    a.e(f"buffer_load_ushort v{uB2}, v{uNeg}, {sr(sW2,4)}, 0 offen")
    a.e("s_waitcnt vmcnt(1)")
    a.e(f"v_mov_b32 v{uG}, 0")
    for d in range(4):
        a.e(f"v_lshlrev_b32 v{uT}, 16, v{uW+d}")
        a.e(f"v_and_b32 v{uT+1}, 0xffff0000, v{uW+d}")
        a.e(f"v_lshlrev_b32 v{uT+2}, 16, v{uW+4+d}")
        a.e(f"v_and_b32 v{uT+3}, 0xffff0000, v{uW+4+d}")
        a.e(f"v_mul_f32 v{uT}, v{uT}, v{uT+2}")
        a.e(f"v_mul_f32 v{uT+1}, v{uT+1}, v{uT+3}")
        a.e(f"v_cvt_pk_bf16_f32 v{uT}, v{uT}, v{uT+1}")
        a.e(f"v_lshlrev_b32 v{uT+1}, 16, v{uT}")
        a.e(f"v_and_b32 v{uT}, 0xffff0000, v{uT}")
        a.e(f"v_add_f32 v{uG}, v{uG}, v{uT+1}")
        a.e(f"v_add_f32 v{uG}, v{uG}, v{uT}")
    def dpp_allred16(reg):
        for m in ("quad_perm:[1,0,3,2]", "quad_perm:[2,3,0,1]", "row_ror:4", "row_ror:8"):
            a.e("s_nop 1")
            a.e(f"v_add_f32_dpp v{reg}, v{reg}, v{reg} {m} {FULL}")
    dpp_allred16(uG)
    allred_rows(a, uG, uT, uT+1, "v_add_f32")
    def rbf(reg):
        a.e(f"v_cvt_pk_bf16_f32 v{reg}, v{reg}, v{reg}")
        a.e(f"v_lshlrev_b32 v{reg}, 16, v{reg}")
    rbf(uG)
    a.e(f"v_mul_f32 v{uG}, 0xbfb8aa3b, v{uG}")
    a.e(f"v_exp_f32 v{uG}, v{uG}")
    a.e("s_nop 0")
    a.e(f"v_add_f32 v{uG}, 1.0, v{uG}")
    a.e(f"v_rcp_f32 v{uG}, v{uG}")
    a.e("s_nop 0")
    rbf(uG)
    a.e(f"v_sub_f32 v{uG1}, 1.0, v{uG}")
    rbf(uG1)
    a.c("wait until every workgroup has cleared its slots")
    a.e(f"s_mov_b32 s{sCNT}, {opt.spin}")
    a.e(f"v_mov_b32 v{uT+4}, 0")
    a.label("L_clr_poll")
    a.e(f"buffer_load_dword v{uT}, v{uT+4}, {sr(sDBG,4)}, 0 offen sc1")
    a.e("s_waitcnt vmcnt(0)")
    a.e(f"v_readfirstlane_b32 s{sT0}, v{uT}")
    a.e(f"s_cmp_ge_u32 s{sT0}, 256")
    a.e("s_cbranch_scc1 L_clr_ok")
    a.e("s_sleep 16")
    a.e(f"s_sub_u32 s{sCNT}, s{sCNT}, 1")
    a.e(f"s_cmp_lg_u32 s{sCNT}, 0")
    a.e("s_cbranch_scc1 L_clr_poll")
    a.label("L_clr_ok")
    def reduce64_8(base):
        reduce_scatter8(a, base)
        a.e("s_nop 1")
        a.e(f"v_add_f32_dpp v{base}, v{base}, v{base} row_ror:8 row_mask:0xf bank_mask:0x3")
        a.e(f"v_add_f32_dpp v{base}, v{base+1}, v{base+1} row_ror:8 row_mask:0xf bank_mask:0xc")
        for m in ("row_half_mirror", "quad_perm:[1,0,3,2]", "quad_perm:[2,3,0,1]"):
            a.e("s_nop 1")
            a.e(f"v_add_f32_dpp v{base}, v{base}, v{base} {m} {FULL}")
    def poll(label, srd_, regs, loads, sleep):
        a.e(f"s_mov_b32 s{sCNT}, {opt.spin}")
        a.label(label)
        for l in loads:
            a.e(l)
        a.e("s_waitcnt vmcnt(0)")
        a.e(f"v_max3_u32 v{uT}, v{regs[0]}, v{regs[1]}, v{regs[2]}")
        rest = regs[3:]
        while rest:
            if len(rest) >= 2:
                a.e(f"v_max3_u32 v{uT}, v{uT}, v{rest[0]}, v{rest[1]}"); rest = rest[2:]
            else:
                a.e(f"v_max_u32 v{uT}, v{uT}, v{rest[0]}"); rest = rest[1:]
        a.e(f"v_cmp_eq_u32 vcc, -1, v{uT}")
        a.e("s_nop 4")
        a.e(f"s_cbranch_vccz {label}_ok")
        if sleep: a.e(f"s_sleep {sleep}")
        a.e(f"s_sub_u32 s{sCNT}, s{sCNT}, 1")
        a.e(f"s_cmp_lg_u32 s{sCNT}, 0")
        a.e(f"s_cbranch_scc1 {label}")
        a.label(label + "_ok")
    a.c("gather the FFN partial rows of this batch: lane = row, 8 columns of group u")
    a.e(f"s_lshl_b32 s{sT0}, s{sB}, 17")
    a.e(f"s_lshl_b32 s{sT1}, s{sU}, 5")
    a.e(f"s_add_u32 s{sT0}, s{sT0}, s{sT1}")
    a.e(f"s_add_u32 s{sT2}, s{sT0}, {WS_Z}")
    srd(a, sW1, 22, sT2, f"{56*2048}")
    a.e(f"s_sub_u32 s{sW1+2}, s{sW1+2}, s{sT1}")
    srd(a, sW2, 22, sT0, f"{64*2048}")
    a.e(f"s_sub_u32 s{sW2+2}, s{sW2+2}, s{sT1}")
    a.e(f"v_lshlrev_b32 v{uOff}, 11, v{vLane}")
    poll("L_z_poll", sW1, list(range(uZ, uZ+8)),
         [f"buffer_load_dwordx4 {vr(uZ,4)}, v{uOff}, {sr(sW1,4)}, 0 offen sc1",
          f"buffer_load_dwordx4 {vr(uZ+4,4)}, v{uOff}, {sr(sW1,4)}, 0 offen offset:16 sc1"], 32)
    reduce64_8(uZ)
    rbf(uZ)
    a.e(f"v_lshlrev_b32 v{uB2}, 16, v{uB2}")
    a.e(f"v_add_f32 v{uZ}, v{uZ}, v{uB2}")
    rbf(uZ)
    a.e(f"v_mul_f32 v{uG1}, v{uG1}, v{uZ}")
    rbf(uG1)
    a.e(f"s_lshl_b32 s{sT0}, s{sB}, 9")
    a.e(f"s_add_u32 s{sT0}, s{sT0}, {WS_ML}")
    srd(a, sK, 22, sT0, "512")
    a.e(f"s_lshl_b32 s{sT0}, s{sB}, 10")
    a.e(f"s_lshl_b32 s{sT1}, s{sU}, 4")
    a.e(f"s_add_u32 s{sT0}, s{sT0}, s{sT1}")
    srd(a, sOUT, 12, sT0, "16")
    a.e(f"v_lshlrev_b32 v{uT+6}, 3, v{vLane}")
    stamp(3)
    a.e("s_barrier")
    a.e("s_barrier")
    stamp(4)
    a.c("gather the attention partial rows")
    yv = uW
    poll("L_y_poll", sW2, list(range(yv, yv+10)),
         [f"buffer_load_dwordx4 {vr(yv,4)}, v{uOff}, {sr(sW2,4)}, 0 offen sc1",
          f"buffer_load_dwordx4 {vr(yv+4,4)}, v{uOff}, {sr(sW2,4)}, 0 offen offset:16 sc1",
          f"buffer_load_dwordx2 {vr(yv+8,2)}, v{uT+6}, {sr(sK,4)}, 0 offen sc1"], opt.ysleep)
    stamp(5)
    m_, l_ = yv+8, yv+9
    a.e(f"v_mov_b32_dpp v{uT}, v{m_} quad_perm:[1,0,3,2] {FULL}")
    a.e(f"v_mov_b32_dpp v{uT+1}, v{l_} quad_perm:[1,0,3,2] {FULL}")
    a.e(f"v_max_f32 v{uT+2}, v{m_}, v{uT}")
    a.e(f"v_sub_f32 v{uT+3}, v{m_}, v{uT+2}")
    a.e(f"v_sub_f32 v{uT}, v{uT}, v{uT+2}")
    a.e(f"v_exp_f32 v{uT+3}, v{uT+3}")
    a.e(f"v_exp_f32 v{uT}, v{uT}")
    a.e("s_nop 0")
    a.e(f"v_mul_f32 v{uT+2}, v{uT+3}, v{l_}")
    a.e(f"v_fma_f32 v{uT+2}, v{uT}, v{uT+1}, v{uT+2}")
    a.e(f"v_rcp_f32 v{uT+2}, v{uT+2}")
    a.e("s_nop 0")
    a.e(f"v_mul_f32 v{uT+2}, v{uT+2}, v{uT+3}")
    for k in range(8):
        a.e(f"v_mul_f32 v{yv+k}, v{uT+2}, v{yv+k}")
    a.e("s_nop 1")
    reduce64_8(yv)
    rbf(yv)
    a.e(f"v_mul_f32 v{yv}, v{uG}, v{yv}")
    rbf(yv)
    a.e(f"v_add_f32 v{yv}, v{yv}, v{uG1}")
    a.e(f"v_cvt_pk_bf16_f32 v{yv}, v{yv}, v{yv}")
    a.e(f"v_and_b32 v{uT}, 7, v{vLane}")
    a.e(f"v_cmp_eq_u32 vcc, 0, v{uT}")
    a.e(f"s_and_saveexec_b64 {sr(sEX,2)}, vcc")
    a.e(f"buffer_store_short v{yv}, v{uNeg}, {sr(sOUT,4)}, 0 offen")
    if opt.stamps:
        a.e(f"s_mov_b64 exec, {sr(sEX,2)}")
        stamp(6)
        a.e("s_waitcnt vmcnt(0)")
        for i in (7, 8, 9): stamp(i)
        dump_stamps(uT, uT+2, vLane, 10)
    a.label("L_end")
    a.e("s_endpgm")

    out = HEADER
    out += f"; @launch grid=(256,1,1) block=(576,1,1) lds={LDS_SIZE}\n"
    out += '.amdgcn_target "amdgcn-amd-amdhsa--gfx950"\n.text\n' + a.text()
    out += f""".section .rodata,"a"
.p2align 6
.amdhsa_kernel {K1}
  .amdhsa_next_free_vgpr {NV}
  .amdhsa_next_free_sgpr 102
  .amdhsa_accum_offset {NV}
  .amdhsa_group_segment_fixed_size 0
  .amdhsa_kernarg_size 112
  .amdhsa_user_sgpr_count 2
  .amdhsa_user_sgpr_kernarg_segment_ptr 1
  .amdhsa_system_sgpr_workgroup_id_x 1
  .amdhsa_float_denorm_mode_32 3
.end_amdhsa_kernel
"""
    return out

def main():
    ap = argparse.ArgumentParser()
    ap.add_argument("-o", default="-")
    ap.add_argument("--policy", default="nt")
    ap.add_argument("--wpolicy", default="")
    ap.add_argument("--stamps", action="store_true")
    ap.add_argument("--la", type=int, default=3)
    ap.add_argument("--p0", type=int, default=6)
    ap.add_argument("--rot", type=int, default=1)
    ap.add_argument("--wo", type=int, default=1)
    ap.add_argument("--auxwin", type=int, default=4)
    ap.add_argument("--spin", type=int, default=200000)
    ap.add_argument("--ysleep", type=int, default=4)
    opt = ap.parse_args()
    out = gen(opt)
    if opt.o == "-": sys.stdout.write(out)
    else: open(opt.o, "w").write(out)

if __name__ == "__main__":
    main()
```

```python
import sys, argparse, struct

NAME = "gated_mix__mha_block_cached__dense_activation_squared_relu__decode"
HEADER = """; Kernarg layout (112 bytes, ptrs only, base s[0:1]):
"""

class Asm:
    def __init__(self):
        self.lines = []
        self.vmq = []
    def e(self, s): self.lines.append("    " + s)
    def c(self, s): self.lines.append("    ; " + s)
    def label(self, l): self.lines.append(l + ":")
    def raw(self, s): self.lines.append(s)
    def vmem(self, s, tag):
        self.e(s); self.vmq.append(tag)
    def wait_vm(self, tag):
        idx = max(i for i, t in enumerate(self.vmq) if t == tag)
        n = len(self.vmq) - idx - 1
        assert n <= 63, n
        self.e(f"s_waitcnt vmcnt({n})")
        self.vmq = self.vmq[idx + 1:]
    def wait_vm_all(self):
        self.e("s_waitcnt vmcnt(0)"); self.vmq = []
    def text(self): return "\n".join(self.lines) + "\n"

def vr(b, n): return f"v[{b}:{b+n-1}]"
def sr(b, n): return f"s[{b}:{b+n-1}]"
def f32bits(x): return struct.unpack("<I", struct.pack("<f", x))[0]
SCALE_LOG2E = 0.08838834764831845 * 1.4426950408889634
FULL = "row_mask:0xf bank_mask:0xf"

WS_Y = 0
WS_Z = 512 * 1024
WS_ML = 1024 * 1024
WS_SIZE = WS_ML + 2048
WS_STAMP = 2 * 1024 * 1024

sK, sV, sWQ, sWO, sX, sW1, sW2, sWS = 24, 28, 32, 36, 40, 44, 48, 52
sH, sB, sS, sW, sU, sIDX = 56, 57, 58, 59, 60, 61
sT0, sT1, sT2, sT3 = 62, 63, 64, 65
sEX = 66
sDBG = 68
sPLO, sPHI, sC = 72, 73, 74
sCNT = 75
sPAR = 76
sOUT = 28
sST = 82

def srd(a, d, plo, off_sgpr, nrec):
    if off_sgpr is None:
        a.e(f"s_mov_b32 s{d}, s{plo}")
        a.e(f"s_and_b32 s{d+1}, s{plo+1}, 0xffff")
    else:
        a.e(f"s_add_u32 s{d}, s{plo}, s{off_sgpr}")
        a.e(f"s_addc_u32 s{d+1}, s{plo+1}, 0")
        a.e(f"s_and_b32 s{d+1}, s{d+1}, 0xffff")
    a.e(f"s_mov_b32 s{d+2}, {nrec}")
    a.e(f"s_mov_b32 s{d+3}, 0x00020000")

def reduce_scatter8(a, base):
    for k in range(4):
        a.e(f"v_permlane32_swap_b32 v{base+k}, v{base+4+k}")
    a.e("s_nop 1")
    for k in range(4):
        a.e(f"v_add_f32 v{base+k}, v{base+k}, v{base+4+k}")
    a.e("s_nop 1")
    for k in range(2):
        a.e(f"v_permlane16_swap_b32 v{base+k}, v{base+2+k}")
    a.e("s_nop 1")
    for k in range(2):
        a.e(f"v_add_f32 v{base+k}, v{base+k}, v{base+2+k}")

def allred_rows(a, reg, t0, t1, op):
    a.e(f"v_mov_b32 v{t0}, v{reg}")
    a.e(f"v_mov_b32 v{t1}, v{reg}")
    a.e("s_nop 1")
    a.e(f"v_permlane32_swap_b32 v{t0}, v{t1}")
    a.e("s_nop 1")
    a.e(f"{op} v{t0}, v{t0}, v{t1}")
    a.e(f"v_mov_b32 v{t1}, v{t0}")
    a.e("s_nop 1")
    a.e(f"v_permlane16_swap_b32 v{t0}, v{t1}")
    a.e("s_nop 1")
    a.e(f"{op} v{reg}, v{t0}, v{t1}")

def gen(opt):
    a = Asm()
    pol = (" " + opt.policy) if opt.policy else ""
    wpol = (" " + opt.wpolicy) if opt.wpolicy else ""
    LA, P0 = opt.la, opt.p0
    assert LA <= P0 <= 8
    def stamp(i):
        if opt.stamps:
            a.e(f"s_memrealtime {sr(sST+2*i,2)}")
    def dump_stamps(vT, vS, vLane, n):
        a.e("s_waitcnt lgkmcnt(0)")
        a.e(f"s_mov_b32 s{sWS+2}, 0x1000000")
        a.e(f"s_lshl_b32 s{sT0}, s2, 4")
        a.e(f"s_add_u32 s{sT0}, s{sT0}, s{sW}")
        a.e(f"s_lshl_b32 s{sT0}, s{sT0}, 7")
        a.e(f"s_add_u32 s{sT0}, s{sT0}, {WS_STAMP}")
        a.e(f"v_cmp_eq_u32 vcc, 0, v{vLane}")
        a.e(f"s_and_saveexec_b64 {sr(sEX,2)}, vcc")
        for i in range(n):
            a.e(f"v_mov_b32 v{vT}, {i*8}")
            a.e(f"v_mov_b32 v{vS}, s{sST+2*i}")
            a.e(f"v_mov_b32 v{vS+1}, s{sST+2*i+1}")
            a.e(f"buffer_store_dwordx2 {vr(vS,2)}, v{vT}, {sr(sWS,4)}, s{sT0} offen")
            a.e("s_nop 1")

    vLane, vK0, vK1 = 1, 2, 3
    vQ, vO, vS = 4, 8, 16
    vM, vL, vPlo, vPhi, vAl = 24, 25, 26, 27, 28
    vT = 29
    vL16, vA0, vA1 = 34, 35, 36
    vKb, vVb, vWQ = 40, 72, 104
    NV = 168
    LDS_QP, LDS_OP, LDS_ML, LDS_YP = 0, 4096, 8192, 8448
    LDS_SIZE = LDS_YP + 16384

    K1 = f"{NAME}_kernel"
    a.raw(f".globl {K1}")
    a.raw(".p2align 8")
    a.raw(f".type {K1},@function")
    a.label(K1)
    a.e("s_cmp_ge_u32 s2, 256")
    a.e("s_cbranch_scc1 L_end")
    stamp(0)
    a.e("s_load_dwordx16 s[4:19], s[0:1], 0")
    a.e("s_load_dwordx2 s[20:21], s[0:1], 64")
    a.e("s_load_dwordx2 s[22:23], s[0:1], 104")
    a.c("workgroup id -> head, batch, key half")
    a.e(f"v_lshrrev_b32 v{vT}, 6, v0")
    a.e(f"s_and_b32 s{sT0}, s2, 7")
    a.e(f"s_lshr_b32 s{sT1}, s2, 3")
    a.e(f"v_readfirstlane_b32 s{sW}, v{vT}")
    a.e(f"s_lshr_b32 s{sT2}, s{sT1}, 3")
    a.e(f"s_lshl_b32 s{sH}, s{sT0}, 2")
    a.e(f"s_add_u32 s{sH}, s{sH}, s{sT2}")
    a.e(f"s_and_b32 s{sT1}, s{sT1}, 7")
    a.e(f"s_lshr_b32 s{sB}, s{sT1}, 1")
    a.e(f"s_and_b32 s{sS}, s{sT1}, 1")
    a.e(f"s_lshl_b32 s{sU}, s{sH}, 1")
    a.e(f"s_add_u32 s{sU}, s{sU}, s{sS}")
    a.e(f"s_lshl_b32 s{sIDX}, s{sB}, 6")
    a.e(f"s_add_u32 s{sIDX}, s{sIDX}, s{sU}")
    a.e(f"v_and_b32 v{vLane}, 63, v0")
    a.e(f"s_mov_b32 s{sPLO}, 0x05040100")
    a.e(f"s_mov_b32 s{sPHI}, 0x07060302")
    a.e(f"s_cmp_eq_u32 s{sW}, 8")
    a.e("s_cbranch_scc1 L_aux")

    if opt.rot:
        a.e(f"s_add_u32 s{sT3}, s{sW}, s{sT1}")
        a.e(f"s_and_b32 s{sT3}, s{sT3}, 7")
    else:
        a.e(f"s_mov_b32 s{sT3}, s{sW}")
    a.e(f"v_lshrrev_b32 v{vT}, 4, v{vLane}")
    a.e(f"v_and_b32 v{vT+1}, 15, v{vLane}")
    a.e(f"v_lshlrev_b32 v{vT+2}, 5, v{vT}")
    a.e(f"v_lshlrev_b32 v{vT+3}, 17, v{vT}")
    a.e(f"v_lshl_add_u32 v{vT+3}, v{vT+1}, 4, v{vT+3}")
    a.e(f"v_lshlrev_b32 v{vA0}, 3, v{vT}")
    a.e(f"v_lshl_add_u32 v{vA0}, v{vT+1}, 5, v{vA0}")
    a.e(f"v_lshlrev_b32 v{vL16}, 4, v{vLane}")
    a.e(f"s_lshl_b32 s{sT0}, s{sW}, 13")
    a.e(f"v_add_u32 v{vK0}, s{sT0}, v{vL16}")
    a.e(f"v_add_u32 v{vK1}, 0x1000, v{vK0}")
    a.e(f"s_lshl_b32 s{sT1}, s{sB}, 10")
    a.e(f"s_lshl_b32 s{sT2}, s{sT3}, 7")
    a.e(f"s_add_u32 s{sT1}, s{sT1}, s{sT2}")
    a.e(f"s_lshl_b32 s{sT2}, s{sT3}, 19")
    a.e(f"s_lshl_b32 s{sT0}, s{sH}, 8")
    a.e("s_waitcnt lgkmcnt(0)")
    srd(a, sX, 4, None, "0x1000")
    srd(a, sWQ, 10, sT0, "0x400000")
    a.e(f"s_sub_u32 s{sWQ+2}, s{sWQ+2}, s{sT0}")
    vXQ = vS
    if opt.q:
        a.vmem(f"buffer_load_dwordx4 {vr(vXQ,4)}, v{vT+2}, {sr(sX,4)}, s{sT1} offen", "xq")
        a.vmem(f"buffer_load_dwordx4 {vr(vXQ+4,4)}, v{vT+2}, {sr(sX,4)}, s{sT1} offen offset:16", "xq")
    for j in range(16 if opt.q else 0):
        a.vmem(f"buffer_load_dwordx4 {vr(vWQ+4*j,4)}, v{vT+3}, {sr(sWQ,4)}, s{sT2} offen{wpol}", f"wq{j}")
        if j < 15:
            a.e(f"s_add_u32 s{sT2}, s{sT2}, 0x2000")
    a.e(f"s_lshl_b32 s{sT0}, s{sB}, 5")
    a.e(f"s_add_u32 s{sT0}, s{sT0}, s{sH}")
    a.e(f"s_lshl_b32 s{sT0}, s{sT0}, 1")
    a.e(f"s_add_u32 s{sT0}, s{sT0}, s{sS}")
    a.e(f"s_lshl_b32 s{sT0}, s{sT0}, 20")
    srd(a, sK, 6, sT0, "0x100000")
    srd(a, sV, 8, sT0, "0x100000")
    def slot_load(n):
        j = n & 7
        base, s_ = (vKb, sK) if n < 8 else (vVb, sV)
        return f"buffer_load_dwordx4 {vr(base+4*j,4)}, v{vK0+(j>>2)}, {sr(s_,4)}, 0 offen offset:{(j&3)*1024}{pol}"
    for n in range(P0):
        a.vmem(slot_load(n), f"t0n{n}")
    a.e(f"s_lshl_b32 s{sT0}, s{sH}, 17")
    a.e(f"s_lshl_b32 s{sT2}, s{sW}, 14")
    a.e(f"s_add_u32 s{sT0}, s{sT0}, s{sT2}")
    srd(a, sWO, 12, sT0, "0x4000")
    srd(a, sWS, 22, None, f"0x{WS_SIZE:x}")
    a.e(f"s_mov_b32 s{sC}, 0x{f32bits(SCALE_LOG2E):08x}")
    a.e(f"s_mov_b32 s{sPAR}, 0xaaaaaaaa")
    a.e(f"s_mov_b32 s{sPAR+1}, 0xaaaaaaaa")
    for k in range(8):
        a.e(f"v_mov_b32 v{vO+k}, 0")
    stamp(1)
    a.c("q partial sums over this wave's 64 rows of wq")
    for p in range(8 if opt.q else 0):
        a.wait_vm(f"wq{2*p+1}")
        for d in range(4):
            r0 = vWQ + 8*p + d
            r1 = vWQ + 8*p + 4 + d
            a.e(f"v_perm_b32 v{vT}, v{r1}, v{r0}, s{sPLO}")
            a.e(f"v_perm_b32 v{vT+1}, v{r1}, v{r0}, s{sPHI}")
            a.e(f"v_dot2c_f32_bf16 v{vO+2*d}, v{vT}, v{vXQ+p}")
            a.e(f"v_dot2c_f32_bf16 v{vO+2*d+1}, v{vT+1}, v{vXQ+p}")
    a.e(f"s_lshl_b32 s{sT0}, s{sW}, 9")
    a.e(f"v_add_u32 v{vT+2}, s{sT0}, v{vA0}")
    a.e("s_nop 0")
    reduce_scatter8(a, vO)
    a.e(f"ds_write_b64 v{vT+2}, {vr(vO,2)} offset:{LDS_QP}")
    stamp(2)
    a.e("s_waitcnt lgkmcnt(0)")
    a.e("s_barrier")
    a.c("q: lane (g,i) sums columns 8i+2g, 8i+2g+1 over the 8 waves, then the rows exchange their pairs")
    for x in range(8):
        a.e(f"ds_read_b64 {vr(vS+ (2*x if x < 4 else 0), 2) if x < 4 else vr(vO+2*(x-4), 2)}, v{vA0} offset:{LDS_QP + x*512}")
    a.e("s_waitcnt lgkmcnt(0)")
    for k in range(2):
        a.e(f"v_add_f32 v{vS+k}, v{vS+k}, v{vS+2+k}")
        a.e(f"v_add_f32 v{vS+4+k}, v{vS+4+k}, v{vS+6+k}")
        a.e(f"v_add_f32 v{vO+k}, v{vO+k}, v{vO+2+k}")
        a.e(f"v_add_f32 v{vO+4+k}, v{vO+4+k}, v{vO+6+k}")
    for k in range(2):
        a.e(f"v_add_f32 v{vS+k}, v{vS+k}, v{vS+4+k}")
        a.e(f"v_add_f32 v{vO+k}, v{vO+k}, v{vO+4+k}")
    for k in range(2):
        a.e(f"v_add_f32 v{vS+k}, v{vS+k}, v{vO+k}")
    a.e(f"v_cvt_pk_bf16_f32 v{vQ}, v{vS}, v{vS+1}")
    a.e(f"v_mov_b32 v{vQ+1}, v{vQ}")
    a.e("s_nop 1")
    a.e(f"v_permlane16_swap_b32 v{vQ}, v{vQ+1}")
    a.e("s_nop 1")
    a.e(f"v_mov_b32 v{vQ+2}, v{vQ}")
    a.e(f"v_mov_b32 v{vQ+3}, v{vQ+1}")
    a.e("s_nop 1")
    a.e(f"v_permlane32_swap_b32 v{vQ}, v{vQ+2}")
    a.e(f"v_permlane32_swap_b32 v{vQ+1}, v{vQ+3}")
    for k in range(8):
        a.e(f"v_mov_b32 v{vO+k}, 0")
    a.e(f"v_mov_b32 v{vM}, 0xff7fffff")
    a.e(f"v_mov_b32 v{vL}, 0")
    stamp(3)

    def pos(j): return 4*(j >> 1) + (j & 1)
    NT = 16
    issued = P0
    def issue_upto(g):
        nonlocal issued
        while issued <= g and issued < NT * 16:
            t, n = divmod(issued, 16)
            if n == 0:
                a.e(f"v_add_u32 v{vK0}, 0x10000, v{vK0}")
                a.e(f"v_add_u32 v{vK1}, 0x10000, v{vK1}")
            a.vmem(slot_load(n), f"t{t}n{n}")
            issued += 1
    def wo_load(j):
        if (j & 3) == 0 or True:
            a.e(f"s_mov_b32 s{sT2}, {(j>>2)*4096}")
        a.vmem(f"buffer_load_dwordx4 {vr(vWQ+4*j,4)}, v{vL16}, {sr(sWO,4)}, s{sT2} offen offset:{(j&3)*1024}{wpol}", f"wo{j}")
    def wo_perm(p):
        for d in range(4):
            r0 = vWQ + 8*p + d
            r1 = vWQ + 8*p + 4 + d
            a.e(f"v_perm_b32 v{vT}, v{r1}, v{r0}, s{sPLO}")
            a.e(f"v_perm_b32 v{r1}, v{r1}, v{r0}, s{sPHI}")
            a.e(f"v_mov_b32 v{r0}, v{vT}")
    for t in range(NT):
        a.c(f"tile {t}")
        if t == 1: stamp(4)
        for j in range(8):
            a.wait_vm(f"t{t}n{j}")
            issue_upto(16*t + j + LA)
            if j == 0 and t < 8 and opt.wo:
                wo_load(2*t); wo_load(2*t+1)
            a.e(f"v_dot2_f32_bf16 v{vS+j}, v{vKb+4*j}, v{vQ}, 0")
            for d in range(1, 4):
                a.e(f"v_dot2_f32_bf16 v{vS+j}, v{vKb+4*j+d}, v{vQ+d}, v{vS+j}")
        a.e("s_nop 2")
        for j in range(4):
            a.e(f"v_add_f32_dpp v{vS+j}, v{vS+j}, v{vS+j} row_ror:8 row_mask:0xf bank_mask:0x3")
        for j in range(4):
            a.e(f"v_add_f32_dpp v{vS+j}, v{vS+j+4}, v{vS+j+4} row_ror:8 row_mask:0xf bank_mask:0xc")
        for j in range(2):
            a.e(f"v_add_f32_dpp v{vS+j}, v{vS+j}, v{vS+j} row_half_mirror row_mask:0xf bank_mask:0x5")
        for j in range(2):
            a.e(f"v_add_f32_dpp v{vS+j}, v{vS+j+2}, v{vS+j+2} row_half_mirror row_mask:0xf bank_mask:0xa")
        a.e("s_nop 0")
        for j in range(2):
            a.e(f"v_add_f32_dpp v{vS+j}, v{vS+j}, v{vS+j} quad_perm:[1,0,3,2] {FULL}")
        a.e("s_nop 0")
        a.e(f"v_cndmask_b32 v{vT}, v{vS}, v{vS+1}, {sr(sPAR,2)}")
        a.e("s_nop 1")
        a.e(f"v_add_f32_dpp v{vT}, v{vT}, v{vT} quad_perm:[2,3,0,1] {FULL}")
        a.e(f"v_mul_f32 v{vT}, s{sC}, v{vT}")
        a.e("s_nop 1")
        a.e(f"v_max_f32_dpp v{vT+1}, v{vT}, v{vT} quad_perm:[1,0,3,2] {FULL}")
        a.e("s_nop 1")
        a.e(f"v_max_f32_dpp v{vT+1}, v{vT+1}, v{vT+1} row_ror:4 {FULL}")
        a.e("s_nop 1")
        a.e(f"v_max_f32_dpp v{vT+1}, v{vT+1}, v{vT+1} row_ror:8 {FULL}")
        a.e(f"v_max_f32 v{vT+1}, v{vT+1}, v{vM}")
        a.e(f"v_sub_f32 v{vAl}, v{vM}, v{vT+1}")
        a.e(f"v_sub_f32 v{vT}, v{vT}, v{vT+1}")
        a.e(f"v_exp_f32 v{vAl}, v{vAl}")
        a.e(f"v_exp_f32 v{vT}, v{vT}")
        a.e(f"v_mov_b32 v{vM}, v{vT+1}")
        a.e(f"v_cvt_pk_bf16_f32 v{vPlo}, v{vT}, 0")
        a.e(f"v_cvt_pk_bf16_f32 v{vPhi}, 0, v{vT}")
        a.e(f"v_fma_f32 v{vL}, v{vL}, v{vAl}, v{vT}")
        for k in range(8):
            a.e(f"v_mul_f32 v{vO+k}, v{vAl}, v{vO+k}")
        for j in range(8):
            a.wait_vm(f"t{t}n{8+j}")
            issue_upto(16*t + 8 + j + LA)
            for d in range(4):
                a.e(f"v_dot2c_f32_bf16_dpp v{vO+2*d}, v{vPlo}, v{vVb+4*j+d} row_newbcast:{pos(j)} {FULL}")
                a.e(f"v_dot2c_f32_bf16_dpp v{vO+2*d+1}, v{vPhi}, v{vVb+4*j+d} row_newbcast:{pos(j)} {FULL}")
        if opt.wo and 1 <= t <= 8:
            wo_perm(t - 1)
    stamp(5)
    a.c("in-wave combine of the 4 lane rows")
    a.e(f"v_mov_b32 v{vT+2}, v{vM}")
    allred_rows(a, vT+2, vT, vT+1, "v_max_f32")
    a.e(f"v_sub_f32 v{vAl}, v{vM}, v{vT+2}")
    a.e(f"v_exp_f32 v{vAl}, v{vAl}")
    a.e(f"v_mov_b32 v{vM}, v{vT+2}")
    a.e(f"v_mul_f32 v{vL}, v{vAl}, v{vL}")
    for k in range(8):
        a.e(f"v_mul_f32 v{vO+k}, v{vAl}, v{vO+k}")
    a.e(f"v_add_f32_dpp v{vL}, v{vL}, v{vL} quad_perm:[1,0,3,2] {FULL}")
    a.e(f"s_lshl_b32 s{sT0}, s{sW}, 9")
    a.e(f"v_add_u32 v{vT+2}, s{sT0}, v{vA0}")
    a.e(f"v_add_f32_dpp v{vL}, v{vL}, v{vL} quad_perm:[2,3,0,1] {FULL}")
    reduce_scatter8(a, vO)
    a.e(f"ds_write_b64 v{vT+2}, {vr(vO,2)} offset:{LDS_OP}")
    a.e(f"v_add_f32_dpp v{vL}, v{vL}, v{vL} row_ror:4 {FULL}")
    a.e(f"s_lshl_b32 s{sT0}, s{sW}, 3")
    a.e(f"v_mov_b32 v{vT+2}, s{sT0}")
    a.e(f"v_add_f32_dpp v{vL}, v{vL}, v{vL} row_ror:8 {FULL}")
    allred_rows(a, vL, vT, vT+1, "v_add_f32")
    a.e(f"v_mul_f32 v{vL}, 0.5, v{vL}")
    a.e(f"ds_write_b64 v{vT+2}, {vr(vM,2)} offset:{LDS_ML}")
    a.e("s_waitcnt lgkmcnt(0)")
    a.e("s_barrier")
    stamp(6)
    a.c("cross-wave combine: lane = (w' = l>>3, p = l&7) reads dims 16w+2p, +1 of wave w'")
    a.e(f"v_lshrrev_b32 v{vT}, 3, v{vLane}")
    a.e(f"v_and_b32 v{vT+1}, 7, v{vLane}")
    a.e(f"v_lshlrev_b32 v{vT+1}, 3, v{vT+1}")
    a.e(f"v_lshl_add_u32 v{vT+1}, v{vT}, 9, v{vT+1}")
    a.e(f"s_lshl_b32 s{sT0}, s{sW}, 6")
    a.e(f"v_add_u32 v{vT+1}, s{sT0}, v{vT+1}")
    a.e(f"v_lshlrev_b32 v{vT}, 3, v{vT}")
    a.e(f"ds_read_b64 {vr(vM,2)}, v{vT} offset:{LDS_ML}")
    a.e(f"ds_read_b64 {vr(vO,2)}, v{vT+1} offset:{LDS_OP}")
    for k in range(8):
        a.e(f"v_mov_b32 v{vS+k}, 0")
    a.e("s_waitcnt lgkmcnt(1)")
    a.e(f"v_max_f32_dpp v{vAl}, v{vM}, v{vM} row_ror:8 {FULL}")
    allred_rows(a, vAl, vT, vT+1, "v_max_f32")
    a.e(f"v_sub_f32 v{vT+2}, v{vM}, v{vAl}")
    a.e(f"v_exp_f32 v{vT+2}, v{vT+2}")
    a.e(f"v_mov_b32 v{vM}, v{vAl}")
    a.e("s_waitcnt lgkmcnt(0)")
    a.e(f"v_mul_f32 v{vO}, v{vT+2}, v{vO}")
    a.e(f"v_mul_f32 v{vO+1}, v{vT+2}, v{vO+1}")
    a.e(f"v_mul_f32 v{vL}, v{vT+2}, v{vL}")
    a.e("s_nop 0")
    for r_ in (vO, vO+1, vL):
        a.e(f"v_add_f32_dpp v{r_}, v{r_}, v{r_} row_ror:8 {FULL}")
    allred_rows(a, vO, vT, vT+1, "v_add_f32")
    allred_rows(a, vO+1, vT+2, vT+3, "v_add_f32")
    a.e(f"v_cvt_pk_bf16_f32 v{vPlo}, v{vO}, v{vO+1}")
    a.c("projection through this wave's 16 rows of wo (pre-permuted into row pairs)")
    a.e(f"s_lshl_b32 s{sT0}, s{sW}, 11")
    a.e(f"v_lshlrev_b32 v{vA1}, 5, v{vLane}")
    a.e(f"v_add_u32 v{vA1}, s{sT0}, v{vA1}")
    for p in range(8):
        for d in range(4):
            r0 = vWQ + 8*p + d
            r1 = vWQ + 8*p + 4 + d
            a.e(f"v_dot2c_f32_bf16_dpp v{vS+2*d}, v{vPlo}, v{r0} row_newbcast:{p} {FULL}")
            a.e(f"v_dot2c_f32_bf16_dpp v{vS+2*d+1}, v{vPlo}, v{r1} row_newbcast:{p} {FULL}")
    allred_rows(a, vL, vT, vT+1, "v_add_f32")
    a.e(f"ds_write_b128 v{vA1}, {vr(vS,4)} offset:{LDS_YP}")
    a.e(f"ds_write_b128 v{vA1}, {vr(vS+4,4)} offset:{LDS_YP+16}")
    a.e("s_waitcnt lgkmcnt(0)")
    a.e("s_barrier")
    stamp(7)
    a.c("waves 0,1: sum the 8 partial rows (4 columns per lane) and publish")
    a.e(f"s_cmp_ge_u32 s{sW}, 2")
    a.e("s_cbranch_scc1 L_stream_done")
    a.e(f"v_lshlrev_b32 v{vT}, 4, v0")
    for x in range(8):
        a.e(f"ds_read_b128 {vr(vWQ+4*x,4)}, v{vT} offset:{LDS_YP + x*2048}")
    a.e(f"s_lshl_b32 s{sT0}, s{sIDX}, 11")
    a.e(f"s_lshl_b32 s{sT2}, s{sIDX}, 3")
    a.e(f"s_add_u32 s{sT2}, s{sT2}, {WS_ML}")
    a.e("s_waitcnt lgkmcnt(4)")
    for k in range(4):
        a.e(f"v_add_f32 v{vWQ+k}, v{vWQ+k}, v{vWQ+4+k}")
        a.e(f"v_add_f32 v{vWQ+8+k}, v{vWQ+8+k}, v{vWQ+12+k}")
    a.e("s_waitcnt lgkmcnt(0)")
    for k in range(4):
        a.e(f"v_add_f32 v{vWQ+16+k}, v{vWQ+16+k}, v{vWQ+20+k}")
        a.e(f"v_add_f32 v{vWQ+24+k}, v{vWQ+24+k}, v{vWQ+28+k}")
    for k in range(4):
        a.e(f"v_add_f32 v{vWQ+k}, v{vWQ+k}, v{vWQ+8+k}")
        a.e(f"v_add_f32 v{vWQ+16+k}, v{vWQ+16+k}, v{vWQ+24+k}")
    for k in range(4):
        a.e(f"v_add_f32 v{vWQ+k}, v{vWQ+k}, v{vWQ+16+k}")
    a.e(f"buffer_store_dwordx4 {vr(vWQ,4)}, v{vT}, {sr(sWS,4)}, s{sT0} offen sc1")
    a.e(f"v_cmp_eq_u32 vcc, 0, v0")
    a.e(f"s_and_saveexec_b64 {sr(sEX,2)}, vcc")
    a.e("s_cbranch_execz L_no_ml")
    a.e(f"v_mov_b32 v{vT+1}, 0")
    a.e(f"buffer_store_dwordx2 {vr(vM,2)}, v{vT+1}, {sr(sWS,4)}, s{sT2} offen sc1")
    a.label("L_no_ml")
    a.e(f"s_mov_b64 exec, {sr(sEX,2)}")
    a.label("L_stream_done")
    if opt.stamps:
        stamp(8)
        a.e("s_waitcnt vmcnt(0)")
        stamp(9)
        dump_stamps(vT, vS, vLane, 10)
    a.e("s_endpgm")

    a.vmq = []
    a.raw(".p2align 6")
    a.label("L_aux")
    uX = 2
    uAcc = 18
    uT = 26
    uW = 40
    uZ = 104
    uML = 112
    uG, uG1, uB2, uOff, uH2, uNeg = 116, 117, 118, 119, 120, 121
    a.e("s_waitcnt lgkmcnt(0)")
    a.e("s_load_dwordx4 s[8:11], s[0:1], 72")
    a.e("s_load_dwordx4 s[12:15], s[0:1], 88")
    a.e("s_waitcnt lgkmcnt(0)")
    srd(a, sX, 4, None, "0x1000")
    srd(a, sWS, 22, None, f"0x{WS_SIZE:x}")
    srd(a, sDBG, 14, None, "256")
    a.e("s_barrier")
    stamp(1)
    if not opt.aux:
        a.e("s_barrier")
        a.e("s_barrier")
        if opt.stamps:
            srd(a, sWS, 22, None, f"0x{WS_SIZE:x}")
            for i in range(2, 10): stamp(i)
            dump_stamps(26, 28, vLane, 10)
        a.e("s_endpgm")
    a.c("clear this workgroup's hand-off slots (y row, z row, m/l) with the 'not written' pattern")
    a.e(f"v_mov_b32 v{uT}, -1")
    a.e(f"v_mov_b32 v{uT+1}, -1")
    a.e(f"v_mov_b32 v{uT+2}, -1")
    a.e(f"v_mov_b32 v{uT+3}, -1")
    a.e(f"v_lshlrev_b32 v{uOff}, 5, v{vLane}")
    a.e(f"s_lshl_b32 s{sT0}, s{sIDX}, 11")
    a.e(f"s_add_u32 s{sT1}, s{sT0}, {WS_Z}")
    a.e(f"s_lshl_b32 s{sT2}, s{sIDX}, 3")
    a.e(f"s_add_u32 s{sT2}, s{sT2}, {WS_ML}")
    a.e(f"buffer_store_dwordx4 {vr(uT,4)}, v{uOff}, {sr(sWS,4)}, s{sT0} offen sc1")
    a.e(f"buffer_store_dwordx4 {vr(uT,4)}, v{uOff}, {sr(sWS,4)}, s{sT0} offen offset:16 sc1")
    a.e(f"buffer_store_dwordx4 {vr(uT,4)}, v{uOff}, {sr(sWS,4)}, s{sT1} offen sc1")
    a.e(f"buffer_store_dwordx4 {vr(uT,4)}, v{uOff}, {sr(sWS,4)}, s{sT1} offen offset:16 sc1")
    a.e(f"v_mov_b32 v{uT+4}, 0")
    a.e(f"v_cmp_eq_u32 vcc, 0, v{vLane}")
    a.e(f"s_and_saveexec_b64 {sr(sEX,2)}, vcc")
    a.e(f"buffer_store_dwordx2 {vr(uT,2)}, v{uT+4}, {sr(sWS,4)}, s{sT2} offen sc1")
    a.e("s_waitcnt vmcnt(0)")
    a.e(f"v_mov_b32 v{uT+5}, 1")
    a.e(f"buffer_atomic_add v{uT+5}, v{uT+4}, {sr(sDBG,4)}, 0 offen sc1")
    a.e(f"s_mov_b64 exec, {sr(sEX,2)}")
    a.c("FFN stage 1: 32 hidden units (8 per lane group c = lane&3), rows 32rr..32rr+31 with rr = lane>>2")
    a.e(f"s_min_u32 s{sT3}, s{sU}, 55")
    a.e(f"s_lshl_b32 s{sT0}, s{sT3}, 6")
    srd(a, sW1, 16, sT0, "0x1c0000")
    a.e(f"s_sub_u32 s{sW1+2}, s{sW1+2}, s{sT0}")
    a.e(f"s_lshl_b32 s{sT0}, s{sT3}, 15")
    srd(a, sW2, 20, sT0, "0x8000")
    a.e(f"s_cmp_ge_u32 s{sU}, 56")
    a.e(f"s_cselect_b32 s{sW1+2}, 0, s{sW1+2}")
    a.e(f"s_cselect_b32 s{sW2+2}, 0, s{sW2+2}")
    a.e(f"v_lshrrev_b32 v{uT}, 2, v{vLane}")
    a.e(f"v_lshlrev_b32 v{uT+1}, 6, v{uT}")
    a.e(f"s_lshl_b32 s{sT1}, s{sB}, 10")
    for x in range(4):
        a.vmem(f"buffer_load_dwordx4 {vr(uX+4*x,4)}, v{uT+1}, {sr(sX,4)}, s{sT1} offen offset:{16*x}", "xf")
    a.e(f"s_mov_b32 s{sT0}, {32*3584}")
    a.e(f"v_mul_lo_u32 v{uT+2}, s{sT0}, v{uT}")
    a.e(f"v_and_b32 v{uT+3}, 3, v{vLane}")
    a.e(f"v_lshl_add_u32 v{uT+2}, v{uT+3}, 4, v{uT+2}")
    for k in range(8):
        a.e(f"v_mov_b32 v{uAcc+k}, 0")
    WIN = opt.auxwin
    def ffn_stream(nload, mk_load, consume):
        issued_ = 0
        for p in range(nload // 2):
            while issued_ < min(nload, 2*p + 2 + WIN):
                a.vmem(mk_load(issued_), f"aux{issued_}")
                issued_ += 1
            a.wait_vm(f"aux{2*p+1}")
            consume(p)
    def w1_load(j):
        a.e(f"s_mov_b32 s{sT2}, {j*3584}")
        return f"buffer_load_dwordx4 {vr(uW+4*(j&15),4)}, v{uT+2}, {sr(sW1,4)}, s{sT2} offen{wpol}"
    def w1_use(p):
        j = (2*p) & 15
        for d in range(4):
            r0 = uW + 4*j + d; r1 = r0 + 4
            a.e(f"v_perm_b32 v{uT+4}, v{r1}, v{r0}, s{sPLO}")
            a.e(f"v_perm_b32 v{uT+5}, v{r1}, v{r0}, s{sPHI}")
            a.e(f"v_dot2c_f32_bf16 v{uAcc+2*d}, v{uT+4}, v{uX+p}")
            a.e(f"v_dot2c_f32_bf16 v{uAcc+2*d+1}, v{uT+5}, v{uX+p}")
    assert WIN + 2 <= 16
    ffn_stream(32, w1_load, w1_use)
    a.e("s_nop 2")
    reduce_scatter8(a, uAcc)
    a.e("s_nop 1")
    for k in range(2):
        a.e(f"v_add_f32_dpp v{uAcc+k}, v{uAcc+k}, v{uAcc+k} row_ror:8 {FULL}")
    a.e("s_nop 0")
    for k in range(2):
        a.e(f"v_add_f32_dpp v{uAcc+k}, v{uAcc+k}, v{uAcc+k} row_ror:4 {FULL}")
    a.c("lane (g, c): units 8c+2g, 8c+2g+1.  h = bf16(bf16(sum) + b1); h2 = bf16(relu(h)^2)")
    a.e(f"s_lshl_b32 s{sT0}, s{sT3}, 6")
    srd(a, sW1, 18, sT0, "64")
    a.e(f"v_lshrrev_b32 v{uT}, 4, v{vLane}")
    a.e(f"v_lshlrev_b32 v{uT}, 2, v{uT}")
    a.e(f"v_and_b32 v{uT+1}, 3, v{vLane}")
    a.e(f"v_lshl_add_u32 v{uT}, v{uT+1}, 4, v{uT}")
    a.vmem(f"buffer_load_dword v{uT+1}, v{uT}, {sr(sW1,4)}, 0 offen", "b1")
    a.e(f"v_cvt_pk_bf16_f32 v{uT+2}, v{uAcc}, v{uAcc+1}")
    a.e(f"v_lshlrev_b32 v{uAcc}, 16, v{uT+2}")
    a.e(f"v_and_b32 v{uAcc+1}, 0xffff0000, v{uT+2}")
    a.wait_vm("b1")
    a.e(f"v_lshlrev_b32 v{uT+2}, 16, v{uT+1}")
    a.e(f"v_and_b32 v{uT+3}, 0xffff0000, v{uT+1}")
    a.e(f"v_add_f32 v{uAcc}, v{uAcc}, v{uT+2}")
    a.e(f"v_add_f32 v{uAcc+1}, v{uAcc+1}, v{uT+3}")
    a.e(f"v_cvt_pk_bf16_f32 v{uT+2}, v{uAcc}, v{uAcc+1}")
    a.e(f"v_lshlrev_b32 v{uAcc}, 16, v{uT+2}")
    a.e(f"v_and_b32 v{uAcc+1}, 0xffff0000, v{uT+2}")
    a.e(f"v_max_f32 v{uAcc}, 0, v{uAcc}")
    a.e(f"v_max_f32 v{uAcc+1}, 0, v{uAcc+1}")
    a.e(f"v_mul_f32 v{uAcc}, v{uAcc}, v{uAcc}")
    a.e(f"v_mul_f32 v{uAcc+1}, v{uAcc+1}, v{uAcc+1}")
    a.e(f"v_cvt_pk_bf16_f32 v{uH2}, v{uAcc}, v{uAcc+1}")
    a.c("FFN stage 2: rows 32u..32u+31 of w2, lane = 8 columns")
    a.e(f"v_lshlrev_b32 v{uT+2}, 4, v{vLane}")
    for k in range(8):
        a.e(f"v_mov_b32 v{uAcc+k}, 0")
    def w2_load(j):
        a.e(f"s_mov_b32 s{sT2}, {(j>>2)*4096}")
        return f"buffer_load_dwordx4 {vr(uW+4*(j&15),4)}, v{uT+2}, {sr(sW2,4)}, s{sT2} offen offset:{(j&3)*1024}{wpol}"
    def w2_use(p):
        c_, g_ = p >> 2, p & 3
        a.e(f"v_readlane_b32 s{sT0}, v{uH2}, {16*g_ + c_}")
        j = (2*p) & 15
        for d in range(4):
            r0 = uW + 4*j + d; r1 = r0 + 4
            a.e(f"v_perm_b32 v{uT+4}, v{r1}, v{r0}, s{sPLO}")
            a.e(f"v_perm_b32 v{uT+5}, v{r1}, v{r0}, s{sPHI}")
            a.e(f"v_dot2c_f32_bf16 v{uAcc+2*d}, s{sT0}, v{uT+4}")
            a.e(f"v_dot2c_f32_bf16 v{uAcc+2*d+1}, s{sT0}, v{uT+5}")
    ffn_stream(32, w2_load, w2_use)
    a.e(f"s_lshl_b32 s{sT0}, s{sIDX}, 11")
    a.e(f"s_add_u32 s{sT1}, s{sT0}, {WS_Z}")
    a.e("s_nop 1")
    a.e(f"buffer_store_dwordx4 {vr(uAcc,4)}, v{uOff}, {sr(sWS,4)}, s{sT1} offen sc1")
    a.e(f"buffer_store_dwordx4 {vr(uAcc+4,4)}, v{uOff}, {sr(sWS,4)}, s{sT1} offen offset:16 sc1")
    stamp(2)
    a.c("gate: g = bf16(sigmoid(bf16(sum bf16(x*w))))")
    a.e(f"v_lshlrev_b32 v{uT}, 4, v{vLane}")
    srd(a, sW1, 10, None, "1024")
    a.e(f"s_lshl_b32 s{sT1}, s{sB}, 10")
    a.e(f"buffer_load_dwordx4 {vr(uW,4)}, v{uT}, {sr(sX,4)}, s{sT1} offen")
    a.e(f"buffer_load_dwordx4 {vr(uW+4,4)}, v{uT}, {sr(sW1,4)}, 0 offen")
    a.c("b2 of this lane's output column: column = 2g + (i >= 8)")
    a.e(f"s_lshl_b32 s{sT0}, s{sU}, 4")
    srd(a, sW2, 8, sT0, "16")
    a.e(f"v_lshrrev_b32 v{uT+1}, 4, v{vLane}")
    a.e(f"v_lshlrev_b32 v{uT+1}, 2, v{uT+1}")
    a.e(f"v_bfe_u32 v{uT+2}, v{vLane}, 3, 1")
    a.e(f"v_lshl_add_u32 v{uNeg}, v{uT+2}, 1, v{uT+1}")
    a.e(f"buffer_load_ushort v{uB2}, v{uNeg}, {sr(sW2,4)}, 0 offen")
    a.e("s_waitcnt vmcnt(1)")
    a.e(f"v_mov_b32 v{uG}, 0")
    for d in range(4):
        a.e(f"v_lshlrev_b32 v{uT}, 16, v{uW+d}")
        a.e(f"v_and_b32 v{uT+1}, 0xffff0000, v{uW+d}")
        a.e(f"v_lshlrev_b32 v{uT+2}, 16, v{uW+4+d}")
        a.e(f"v_and_b32 v{uT+3}, 0xffff0000, v{uW+4+d}")
        a.e(f"v_mul_f32 v{uT}, v{uT}, v{uT+2}")
        a.e(f"v_mul_f32 v{uT+1}, v{uT+1}, v{uT+3}")
        a.e(f"v_cvt_pk_bf16_f32 v{uT}, v{uT}, v{uT+1}")
        a.e(f"v_lshlrev_b32 v{uT+1}, 16, v{uT}")
        a.e(f"v_and_b32 v{uT}, 0xffff0000, v{uT}")
        a.e(f"v_add_f32 v{uG}, v{uG}, v{uT+1}")
        a.e(f"v_add_f32 v{uG}, v{uG}, v{uT}")
    def dpp_allred16(reg):
        for m in ("quad_perm:[1,0,3,2]", "quad_perm:[2,3,0,1]", "row_ror:4", "row_ror:8"):
            a.e("s_nop 1")
            a.e(f"v_add_f32_dpp v{reg}, v{reg}, v{reg} {m} {FULL}")
    dpp_allred16(uG)
    allred_rows(a, uG, uT, uT+1, "v_add_f32")
    def rbf(reg):
        a.e(f"v_cvt_pk_bf16_f32 v{reg}, v{reg}, v{reg}")
        a.e(f"v_lshlrev_b32 v{reg}, 16, v{reg}")
    rbf(uG)
    a.e(f"v_mul_f32 v{uG}, 0xbfb8aa3b, v{uG}")
    a.e(f"v_exp_f32 v{uG}, v{uG}")
    a.e("s_nop 0")
    a.e(f"v_add_f32 v{uG}, 1.0, v{uG}")
    a.e(f"v_rcp_f32 v{uG}, v{uG}")
    a.e("s_nop 0")
    rbf(uG)
    a.e(f"v_sub_f32 v{uG1}, 1.0, v{uG}")
    rbf(uG1)
    a.c("wait until every workgroup has cleared its slots")
    a.e(f"s_mov_b32 s{sCNT}, {opt.spin}")
    a.e(f"v_mov_b32 v{uT+4}, 0")
    a.label("L_clr_poll")
    a.e(f"buffer_load_dword v{uT}, v{uT+4}, {sr(sDBG,4)}, 0 offen sc1")
    a.e("s_waitcnt vmcnt(0)")
    a.e(f"v_readfirstlane_b32 s{sT0}, v{uT}")
    a.e(f"s_cmp_ge_u32 s{sT0}, 256")
    a.e("s_cbranch_scc1 L_clr_ok")
    a.e("s_sleep 16")
    a.e(f"s_sub_u32 s{sCNT}, s{sCNT}, 1")
    a.e(f"s_cmp_lg_u32 s{sCNT}, 0")
    a.e("s_cbranch_scc1 L_clr_poll")
    a.label("L_clr_ok")
    def reduce64_8(base):
        reduce_scatter8(a, base)
        a.e("s_nop 1")
        a.e(f"v_add_f32_dpp v{base}, v{base}, v{base} row_ror:8 row_mask:0xf bank_mask:0x3")
        a.e(f"v_add_f32_dpp v{base}, v{base+1}, v{base+1} row_ror:8 row_mask:0xf bank_mask:0xc")
        for m in ("row_half_mirror", "quad_perm:[1,0,3,2]", "quad_perm:[2,3,0,1]"):
            a.e("s_nop 1")
            a.e(f"v_add_f32_dpp v{base}, v{base}, v{base} {m} {FULL}")
    def poll(label, srd_, regs, loads, sleep):
        a.e(f"s_mov_b32 s{sCNT}, {opt.spin}")
        a.label(label)
        for l in loads:
            a.e(l)
        a.e("s_waitcnt vmcnt(0)")
        a.e(f"v_max3_u32 v{uT}, v{regs[0]}, v{regs[1]}, v{regs[2]}")
        rest = regs[3:]
        while rest:
            if len(rest) >= 2:
                a.e(f"v_max3_u32 v{uT}, v{uT}, v{rest[0]}, v{rest[1]}"); rest = rest[2:]
            else:
                a.e(f"v_max_u32 v{uT}, v{uT}, v{rest[0]}"); rest = rest[1:]
        a.e(f"v_cmp_eq_u32 vcc, -1, v{uT}")
        a.e("s_nop 4")
        a.e(f"s_cbranch_vccz {label}_ok")
        if sleep: a.e(f"s_sleep {sleep}")
        a.e(f"s_sub_u32 s{sCNT}, s{sCNT}, 1")
        a.e(f"s_cmp_lg_u32 s{sCNT}, 0")
        a.e(f"s_cbranch_scc1 {label}")
        a.label(label + "_ok")
    a.c("gather the FFN partial rows of this batch: lane = row, 8 columns of group u")
    a.e(f"s_lshl_b32 s{sT0}, s{sB}, 17")
    a.e(f"s_lshl_b32 s{sT1}, s{sU}, 5")
    a.e(f"s_add_u32 s{sT0}, s{sT0}, s{sT1}")
    a.e(f"s_add_u32 s{sT2}, s{sT0}, {WS_Z}")
    srd(a, sW1, 22, sT2, f"{56*2048}")
    a.e(f"s_sub_u32 s{sW1+2}, s{sW1+2}, s{sT1}")
    srd(a, sW2, 22, sT0, f"{64*2048}")
    a.e(f"s_sub_u32 s{sW2+2}, s{sW2+2}, s{sT1}")
    a.e(f"v_lshlrev_b32 v{uOff}, 11, v{vLane}")
    poll("L_z_poll", sW1, list(range(uZ, uZ+8)),
         [f"buffer_load_dwordx4 {vr(uZ,4)}, v{uOff}, {sr(sW1,4)}, 0 offen sc1",
          f"buffer_load_dwordx4 {vr(uZ+4,4)}, v{uOff}, {sr(sW1,4)}, 0 offen offset:16 sc1"], 32)
    reduce64_8(uZ)
    rbf(uZ)
    a.e(f"v_lshlrev_b32 v{uB2}, 16, v{uB2}")
    a.e(f"v_add_f32 v{uZ}, v{uZ}, v{uB2}")
    rbf(uZ)
    a.e(f"v_mul_f32 v{uG1}, v{uG1}, v{uZ}")
    rbf(uG1)
    a.e(f"s_lshl_b32 s{sT0}, s{sB}, 9")
    a.e(f"s_add_u32 s{sT0}, s{sT0}, {WS_ML}")
    srd(a, sK, 22, sT0, "512")
    a.e(f"s_lshl_b32 s{sT0}, s{sB}, 10")
    a.e(f"s_lshl_b32 s{sT1}, s{sU}, 4")
    a.e(f"s_add_u32 s{sT0}, s{sT0}, s{sT1}")
    srd(a, sOUT, 12, sT0, "16")
    a.e(f"v_lshlrev_b32 v{uT+6}, 3, v{vLane}")
    stamp(3)
    a.e("s_barrier")
    a.e("s_barrier")
    stamp(4)
    a.c("gather the attention partial rows")
    yv = uW
    poll("L_y_poll", sW2, list(range(yv, yv+10)),
         [f"buffer_load_dwordx4 {vr(yv,4)}, v{uOff}, {sr(sW2,4)}, 0 offen sc1",
          f"buffer_load_dwordx4 {vr(yv+4,4)}, v{uOff}, {sr(sW2,4)}, 0 offen offset:16 sc1",
          f"buffer_load_dwordx2 {vr(yv+8,2)}, v{uT+6}, {sr(sK,4)}, 0 offen sc1"], opt.ysleep)
    stamp(5)
    m_, l_ = yv+8, yv+9
    a.e(f"v_mov_b32_dpp v{uT}, v{m_} quad_perm:[1,0,3,2] {FULL}")
    a.e(f"v_mov_b32_dpp v{uT+1}, v{l_} quad_perm:[1,0,3,2] {FULL}")
    a.e(f"v_max_f32 v{uT+2}, v{m_}, v{uT}")
    a.e(f"v_sub_f32 v{uT+3}, v{m_}, v{uT+2}")
    a.e(f"v_sub_f32 v{uT}, v{uT}, v{uT+2}")
    a.e(f"v_exp_f32 v{uT+3}, v{uT+3}")
    a.e(f"v_exp_f32 v{uT}, v{uT}")
    a.e("s_nop 0")
    a.e(f"v_mul_f32 v{uT+2}, v{uT+3}, v{l_}")
    a.e(f"v_fma_f32 v{uT+2}, v{uT}, v{uT+1}, v{uT+2}")
    a.e(f"v_rcp_f32 v{uT+2}, v{uT+2}")
    a.e("s_nop 0")
    a.e(f"v_mul_f32 v{uT+2}, v{uT+2}, v{uT+3}")
    for k in range(8):
        a.e(f"v_mul_f32 v{yv+k}, v{uT+2}, v{yv+k}")
    a.e("s_nop 1")
    reduce64_8(yv)
    rbf(yv)
    a.e(f"v_mul_f32 v{yv}, v{uG}, v{yv}")
    rbf(yv)
    a.e(f"v_add_f32 v{yv}, v{yv}, v{uG1}")
    a.e(f"v_cvt_pk_bf16_f32 v{yv}, v{yv}, v{yv}")
    a.e(f"v_and_b32 v{uT}, 7, v{vLane}")
    a.e(f"v_cmp_eq_u32 vcc, 0, v{uT}")
    a.e(f"s_and_saveexec_b64 {sr(sEX,2)}, vcc")
    a.e(f"buffer_store_short v{yv}, v{uNeg}, {sr(sOUT,4)}, 0 offen")
    if opt.stamps:
        a.e(f"s_mov_b64 exec, {sr(sEX,2)}")
        stamp(6)
        a.e("s_waitcnt vmcnt(0)")
        for i in (7, 8, 9): stamp(i)
        dump_stamps(uT, uT+2, vLane, 10)
    a.label("L_end")
    a.e("s_endpgm")

    out = HEADER
    out += f"; @launch grid=(256,1,1) block=(576,1,1) lds={LDS_SIZE}\n"
    out += '.amdgcn_target "amdgcn-amd-amdhsa--gfx950"\n.text\n' + a.text()
    out += f""".section .rodata,"a"
.p2align 6
.amdhsa_kernel {K1}
  .amdhsa_next_free_vgpr {NV}
  .amdhsa_next_free_sgpr 102
  .amdhsa_accum_offset {NV}
  .amdhsa_group_segment_fixed_size 0
  .amdhsa_kernarg_size 112
  .amdhsa_user_sgpr_count 2
  .amdhsa_user_sgpr_kernarg_segment_ptr 1
  .amdhsa_system_sgpr_workgroup_id_x 1
  .amdhsa_float_denorm_mode_32 3
.end_amdhsa_kernel
"""
    return out

def main():
    ap = argparse.ArgumentParser()
    ap.add_argument("-o", default="-")
    ap.add_argument("--policy", default="nt")
    ap.add_argument("--wpolicy", default="")
    ap.add_argument("--stamps", action="store_true")
    ap.add_argument("--la", type=int, default=3)
    ap.add_argument("--p0", type=int, default=6)
    ap.add_argument("--rot", type=int, default=1)
    ap.add_argument("--wo", type=int, default=1)
    ap.add_argument("--q", type=int, default=1)
    ap.add_argument("--aux", type=int, default=1)
    ap.add_argument("--auxwin", type=int, default=4)
    ap.add_argument("--spin", type=int, default=200000)
    ap.add_argument("--ysleep", type=int, default=4)
    opt = ap.parse_args()
    out = gen(opt)
    if opt.o == "-": sys.stdout.write(out)
    else: open(opt.o, "w").write(out)

if __name__ == "__main__":
    main()
```

```python
import sys, argparse, struct

NAME = "gated_mix__mha_block_cached__dense_activation_squared_relu__decode"
HEADER = """; Kernarg layout (112 bytes, ptrs only, base s[0:1]):
"""

class Asm:
    def __init__(self):
        self.lines = []
        self.vmq = []
        self.done = set()
    def e(self, s): self.lines.append("    " + s)
    def c(self, s): self.lines.append("    ; " + s)
    def label(self, l): self.lines.append(l + ":")
    def raw(self, s): self.lines.append(s)
    def vmem(self, s, tag):
        self.e(s); self.vmq.append(tag)
    def wait_vm(self, tag):
        if tag not in self.vmq:
            assert tag in self.done, tag
            return
        idx = max(i for i, t in enumerate(self.vmq) if t == tag)
        n = len(self.vmq) - idx - 1
        assert n <= 63, n
        self.e(f"s_waitcnt vmcnt({n})")
        self.done.update(self.vmq[:idx + 1])
        self.vmq = self.vmq[idx + 1:]
    def wait_vm_all(self):
        self.e("s_waitcnt vmcnt(0)"); self.vmq = []
    def text(self): return "\n".join(self.lines) + "\n"

def vr(b, n): return f"v[{b}:{b+n-1}]"
def sr(b, n): return f"s[{b}:{b+n-1}]"
def f32bits(x): return struct.unpack("<I", struct.pack("<f", x))[0]
SCALE_LOG2E = 0.08838834764831845 * 1.4426950408889634
FULL = "row_mask:0xf bank_mask:0xf"

YROW = 2176
WS_Y = 0
WS_Z = 640 * 1024
WS_FLAG = WS_Z + 512 * 1024
WS_EPOCH = WS_FLAG + 256 * 128
WS_SIZE = WS_EPOCH + 4 * 128
WS_STAMP = 2 * 1024 * 1024
assert 256 * YROW <= WS_Z

sK, sV, sWQ, sWO, sX, sW1, sW2, sWS = 24, 28, 32, 36, 40, 44, 48, 52
sH, sB, sS, sW, sU, sIDX = 56, 57, 58, 59, 60, 61
sT0, sT1, sT2, sT3 = 62, 63, 64, 65
sEX = 66
sDBG = 68
sPLO, sPHI, sC = 72, 73, 74
sCNT = 75
sPAR = 76
sOUT = 28
sST = 82

def srd(a, d, plo, off_sgpr, nrec):
    if off_sgpr is None:
        a.e(f"s_mov_b32 s{d}, s{plo}")
        a.e(f"s_and_b32 s{d+1}, s{plo+1}, 0xffff")
    else:
        a.e(f"s_add_u32 s{d}, s{plo}, s{off_sgpr}")
        a.e(f"s_addc_u32 s{d+1}, s{plo+1}, 0")
        a.e(f"s_and_b32 s{d+1}, s{d+1}, 0xffff")
    a.e(f"s_mov_b32 s{d+2}, {nrec}")
    a.e(f"s_mov_b32 s{d+3}, 0x00020000")

def reduce_scatter8(a, base):
    for k in range(4):
        a.e(f"v_permlane32_swap_b32 v{base+k}, v{base+4+k}")
    a.e("s_nop 1")
    for k in range(4):
        a.e(f"v_add_f32 v{base+k}, v{base+k}, v{base+4+k}")
    a.e("s_nop 1")
    for k in range(2):
        a.e(f"v_permlane16_swap_b32 v{base+k}, v{base+2+k}")
    a.e("s_nop 1")
    for k in range(2):
        a.e(f"v_add_f32 v{base+k}, v{base+k}, v{base+2+k}")

def allred_rows(a, reg, t0, t1, op):
    a.e(f"v_mov_b32 v{t0}, v{reg}")
    a.e(f"v_mov_b32 v{t1}, v{reg}")
    a.e("s_nop 1")
    a.e(f"v_permlane32_swap_b32 v{t0}, v{t1}")
    a.e("s_nop 1")
    a.e(f"{op} v{t0}, v{t0}, v{t1}")
    a.e(f"v_mov_b32 v{t1}, v{t0}")
    a.e("s_nop 1")
    a.e(f"v_permlane16_swap_b32 v{t0}, v{t1}")
    a.e("s_nop 1")
    a.e(f"{op} v{reg}, v{t0}, v{t1}")

def gen(opt):
    a = Asm()
    pol = (" " + opt.policy) if opt.policy else ""
    wpol = (" " + opt.wpolicy) if opt.wpolicy else ""
    LAF, P0 = opt.la, opt.p0
    LA = int(LAF)
    def la_at(g):
        fr = LAF - LA
        return LA + (1 if int((g + 1) * fr + 1e-9) > int(g * fr + 1e-9) else 0)
    assert LA <= P0 <= 16
    def stamp(i):
        if opt.stamps:
            a.e(f"s_memrealtime {sr(sST+2*i,2)}")
    def dump_stamps(vT, vS, vLane, n):
        a.e("s_waitcnt lgkmcnt(0)")
        a.e(f"s_mov_b32 s{sWS+2}, 0x1000000")
        a.e(f"s_lshl_b32 s{sT0}, s2, 4")
        a.e(f"s_add_u32 s{sT0}, s{sT0}, s{sW}")
        a.e(f"s_lshl_b32 s{sT0}, s{sT0}, 7")
        a.e(f"s_add_u32 s{sT0}, s{sT0}, {WS_STAMP}")
        a.e(f"v_cmp_eq_u32 vcc, 0, v{vLane}")
        a.e(f"s_and_saveexec_b64 {sr(sEX,2)}, vcc")
        for i in range(n):
            a.e(f"v_mov_b32 v{vT}, {i*8}")
            a.e(f"v_mov_b32 v{vS}, s{sST+2*i}")
            a.e(f"v_mov_b32 v{vS+1}, s{sST+2*i+1}")
            a.e(f"buffer_store_dwordx2 {vr(vS,2)}, v{vT}, {sr(sWS,4)}, s{sT0} offen")
            a.e("s_nop 1")

    vLane, vK0, vK1 = 1, 2, 3
    vQ, vO, vS = 4, 8, 16
    vM, vL, vPlo, vPhi, vAl = 24, 25, 26, 27, 28
    vT = 29
    vL16, vA0, vA1 = 34, 35, 36
    vKb, vVb, vWQ = 40, 72, 104
    NV = 168
    LDS_QP, LDS_OP, LDS_ML, LDS_FLAG, LDS_YP = 0, 4096, 8192, 8320, 8448
    LDS_SIZE = LDS_YP + 16384

    K1 = f"{NAME}_kernel"
    a.raw(f".globl {K1}")
    a.raw(".p2align 8")
    a.raw(f".type {K1},@function")
    a.label(K1)
    a.e("s_cmp_ge_u32 s2, 256")
    a.e("s_cbranch_scc1 L_end")
    stamp(0)
    a.e("s_load_dwordx16 s[4:19], s[0:1], 0")
    a.e("s_load_dwordx2 s[20:21], s[0:1], 64")
    a.e("s_load_dwordx2 s[22:23], s[0:1], 104")
    a.c("workgroup id -> head, batch, key half")
    a.e(f"v_lshrrev_b32 v{vT}, 6, v0")
    a.e(f"s_and_b32 s{sT0}, s2, 7")
    a.e(f"s_lshr_b32 s{sT1}, s2, 3")
    a.e(f"v_readfirstlane_b32 s{sW}, v{vT}")
    a.e(f"s_lshr_b32 s{sT2}, s{sT1}, 3")
    if opt.map == "g3":
        a.e(f"s_lshl_b32 s{sH}, s{sT0}, 2")
        a.e(f"s_add_u32 s{sH}, s{sH}, s{sT2}")
    else:
        a.e(f"s_lshl_b32 s{sH}, s{sT2}, 3")
        a.e(f"s_add_u32 s{sH}, s{sH}, s{sT0}")
    a.e(f"s_and_b32 s{sT1}, s{sT1}, 7")
    a.e(f"s_lshr_b32 s{sB}, s{sT1}, 1")
    a.e(f"s_and_b32 s{sS}, s{sT1}, 1")
    a.e(f"s_lshl_b32 s{sU}, s{sH}, 1")
    a.e(f"s_add_u32 s{sU}, s{sU}, s{sS}")
    a.e(f"s_lshl_b32 s{sIDX}, s{sB}, 6")
    a.e(f"s_add_u32 s{sIDX}, s{sIDX}, s{sU}")
    a.e(f"v_and_b32 v{vLane}, 63, v0")
    a.e(f"s_mov_b32 s{sPLO}, 0x05040100")
    a.e(f"s_mov_b32 s{sPHI}, 0x07060302")
    a.e(f"s_cmp_eq_u32 s{sW}, 8")
    a.e("s_cbranch_scc1 L_aux")

    if opt.rot:
        a.e(f"s_add_u32 s{sT3}, s{sW}, s{sT1}")
        a.e(f"s_and_b32 s{sT3}, s{sT3}, 7")
    else:
        a.e(f"s_mov_b32 s{sT3}, s{sW}")
    a.e(f"v_lshrrev_b32 v{vT}, 4, v{vLane}")
    a.e(f"v_and_b32 v{vT+1}, 15, v{vLane}")
    a.e(f"v_lshlrev_b32 v{vT+2}, 5, v{vT}")
    a.e(f"v_lshlrev_b32 v{vT+3}, 17, v{vT}")
    a.e(f"v_lshl_add_u32 v{vT+3}, v{vT+1}, 4, v{vT+3}")
    a.e(f"v_lshlrev_b32 v{vA0}, 3, v{vT}")
    a.e(f"v_lshl_add_u32 v{vA0}, v{vT+1}, 5, v{vA0}")
    a.e(f"v_lshlrev_b32 v{vL16}, 4, v{vLane}")
    a.e(f"s_lshl_b32 s{sT0}, s{sW}, 13")
    a.e(f"v_add_u32 v{vK0}, s{sT0}, v{vL16}")
    a.e(f"v_add_u32 v{vK1}, 0x1000, v{vK0}")
    a.e(f"s_lshl_b32 s{sT1}, s{sB}, 10")
    a.e(f"s_lshl_b32 s{sT2}, s{sT3}, 7")
    a.e(f"s_add_u32 s{sT1}, s{sT1}, s{sT2}")
    a.e(f"s_lshl_b32 s{sT2}, s{sT3}, 19")
    a.e(f"s_lshl_b32 s{sT0}, s{sH}, 8")
    a.e("s_waitcnt lgkmcnt(0)")
    srd(a, sX, 4, None, "0x1000")
    srd(a, sWQ, 10, sT0, "0x400000")
    a.e(f"s_sub_u32 s{sWQ+2}, s{sWQ+2}, s{sT0}")
    vXQ = vS
    if opt.q:
        a.vmem(f"buffer_load_dwordx4 {vr(vXQ,4)}, v{vT+2}, {sr(sX,4)}, s{sT1} offen", "xq")
        a.vmem(f"buffer_load_dwordx4 {vr(vXQ+4,4)}, v{vT+2}, {sr(sX,4)}, s{sT1} offen offset:16", "xq")
    a.e(f"s_lshl_b32 s{sT0}, s{sB}, 5")
    a.e(f"s_add_u32 s{sT0}, s{sT0}, s{sH}")
    a.e(f"s_lshl_b32 s{sT0}, s{sT0}, 1")
    a.e(f"s_add_u32 s{sT0}, s{sT0}, s{sS}")
    a.e(f"s_lshl_b32 s{sT0}, s{sT0}, 20")
    srd(a, sK, 6, sT0, "0x100000")
    srd(a, sV, 8, sT0, "0x100000")
    def slot_load(n):
        j = n & 7
        base, s_ = (vKb, sK) if n < 8 else (vVb, sV)
        return f"buffer_load_dwordx4 {vr(base+4*j,4)}, v{vK0+(j>>2)}, {sr(s_,4)}, 0 offen offset:{(j&3)*1024}{pol}"
    NT = 16
    issued = 0
    def issue_upto(g):
        nonlocal issued
        while issued <= g and issued < NT * 16:
            t, n = divmod(issued, 16)
            if n == 0 and t > 0:
                a.e(f"v_add_u32 v{vK0}, 0x10000, v{vK0}")
                a.e(f"v_add_u32 v{vK1}, 0x10000, v{vK1}")
            a.vmem(slot_load(n), f"t{t}n{n}")
            issued += 1
    PA, PB = opt.pa, opt.pb
    for j in range(16 if opt.q else 0):
        a.vmem(f"buffer_load_dwordx4 {vr(vWQ+4*j,4)}, v{vT+3}, {sr(sWQ,4)}, s{sT2} offen{wpol}", f"wq{j}")
        if j < 15:
            a.e(f"s_add_u32 s{sT2}, s{sT2}, 0x2000")
        if (j + 1) % opt.ilv == 0 and issued < PA:
            issue_upto(issued)
    issue_upto(min(P0, PA + PB) - 1)
    a.e(f"s_lshl_b32 s{sT0}, s{sH}, 17")
    a.e(f"s_lshl_b32 s{sT2}, s{sW}, 14")
    a.e(f"s_add_u32 s{sT0}, s{sT0}, s{sT2}")
    srd(a, sWO, 12, sT0, "0x4000")
    srd(a, sWS, 22, None, f"0x{WS_SIZE:x}")
    a.e(f"s_mov_b32 s{sC}, 0x{f32bits(SCALE_LOG2E):08x}")
    a.e(f"s_mov_b32 s{sPAR}, 0xaaaaaaaa")
    a.e(f"s_mov_b32 s{sPAR+1}, 0xaaaaaaaa")
    for k in range(8):
        a.e(f"v_mov_b32 v{vO+k}, 0")
    stamp(1)
    a.c("q partial sums over this wave's 64 rows of wq")
    for p in range(8 if opt.q else 0):
        a.wait_vm(f"wq{2*p+1}")
        for d in range(4):
            r0 = vWQ + 8*p + d
            r1 = vWQ + 8*p + 4 + d
            a.e(f"v_perm_b32 v{vT}, v{r1}, v{r0}, s{sPLO}")
            a.e(f"v_perm_b32 v{vT+1}, v{r1}, v{r0}, s{sPHI}")
            a.e(f"v_dot2c_f32_bf16 v{vO+2*d}, v{vT}, v{vXQ+p}")
            a.e(f"v_dot2c_f32_bf16 v{vO+2*d+1}, v{vT+1}, v{vXQ+p}")
        if issued < P0: issue_upto(issued)
    issue_upto(P0 - 1)
    a.e(f"s_lshl_b32 s{sT0}, s{sW}, 9")
    a.e(f"v_add_u32 v{vT+2}, s{sT0}, v{vA0}")
    a.e("s_nop 0")
    reduce_scatter8(a, vO)
    a.e(f"ds_write_b64 v{vT+2}, {vr(vO,2)} offset:{LDS_QP}")
    stamp(2)
    a.e("s_waitcnt lgkmcnt(0)")
    a.e("s_barrier")
    a.c("q: lane (g,i) sums columns 8i+2g, 8i+2g+1 over the 8 waves, then the rows exchange their pairs")
    for x in range(8):
        a.e(f"ds_read_b64 {vr(vS+ (2*x if x < 4 else 0), 2) if x < 4 else vr(vO+2*(x-4), 2)}, v{vA0} offset:{LDS_QP + x*512}")
    a.e("s_waitcnt lgkmcnt(0)")
    for k in range(2):
        a.e(f"v_add_f32 v{vS+k}, v{vS+k}, v{vS+2+k}")
        a.e(f"v_add_f32 v{vS+4+k}, v{vS+4+k}, v{vS+6+k}")
        a.e(f"v_add_f32 v{vO+k}, v{vO+k}, v{vO+2+k}")
        a.e(f"v_add_f32 v{vO+4+k}, v{vO+4+k}, v{vO+6+k}")
    for k in range(2):
        a.e(f"v_add_f32 v{vS+k}, v{vS+k}, v{vS+4+k}")
        a.e(f"v_add_f32 v{vO+k}, v{vO+k}, v{vO+4+k}")
    for k in range(2):
        a.e(f"v_add_f32 v{vS+k}, v{vS+k}, v{vO+k}")
    a.e(f"v_cvt_pk_bf16_f32 v{vQ}, v{vS}, v{vS+1}")
    a.e(f"v_mov_b32 v{vQ+1}, v{vQ}")
    a.e("s_nop 1")
    a.e(f"v_permlane16_swap_b32 v{vQ}, v{vQ+1}")
    a.e("s_nop 1")
    a.e(f"v_mov_b32 v{vQ+2}, v{vQ}")
    a.e(f"v_mov_b32 v{vQ+3}, v{vQ+1}")
    a.e("s_nop 1")
    a.e(f"v_permlane32_swap_b32 v{vQ}, v{vQ+2}")
    a.e(f"v_permlane32_swap_b32 v{vQ+1}, v{vQ+3}")
    for k in range(8):
        a.e(f"v_mov_b32 v{vO+k}, 0")
    a.e(f"v_mov_b32 v{vM}, 0xff7fffff")
    a.e(f"v_mov_b32 v{vL}, 0")
    stamp(3)

    def pos(j): return 4*(j >> 1) + (j & 1)
    def wo_load(j):
        if (j & 3) == 0 or True:
            a.e(f"s_mov_b32 s{sT2}, {(j>>2)*4096}")
        a.vmem(f"buffer_load_dwordx4 {vr(vWQ+4*j,4)}, v{vL16}, {sr(sWO,4)}, s{sT2} offen offset:{(j&3)*1024}{wpol}", f"wo{j}")
    def wo_perm(p):
        for d in range(4):
            r0 = vWQ + 8*p + d
            r1 = vWQ + 8*p + 4 + d
            a.e(f"v_perm_b32 v{vT}, v{r1}, v{r0}, s{sPLO}")
            a.e(f"v_perm_b32 v{r1}, v{r1}, v{r0}, s{sPHI}")
            a.e(f"v_mov_b32 v{r0}, v{vT}")
    for t in range(NT):
        a.c(f"tile {t}")
        if t == 1: stamp(4)
        if t == opt.ztile:
            a.c("tell the auxiliary wave that the FFN rows of all workgroups are long due (wave 0 only)")
            a.e(f"s_cmp_lg_u32 s{sW}, 0")
            a.e(f"s_cbranch_scc1 L_noflag")
            a.e(f"v_mov_b32 v{vT}, {LDS_FLAG}")
            a.e(f"v_mov_b32 v{vT+1}, 1")
            a.e(f"ds_write_b32 v{vT}, v{vT+1}")
            a.label("L_noflag")
        for j in range(8):
            a.wait_vm(f"t{t}n{j}")
            issue_upto(16*t + j + la_at(16*t + j))
            if j == 0 and t < 8 and opt.wo:
                wo_load(2*t); wo_load(2*t+1)
            if opt.nocomp & 1: continue
            a.e(f"v_dot2_f32_bf16 v{vS+j}, v{vKb+4*j}, v{vQ}, 0")
            for d in range(1, 4):
                a.e(f"v_dot2_f32_bf16 v{vS+j}, v{vKb+4*j+d}, v{vQ+d}, v{vS+j}")
        mark = len(a.lines)
        a.e("s_nop 2")
        for j in range(4):
            a.e(f"v_add_f32_dpp v{vS+j}, v{vS+j}, v{vS+j} row_ror:8 row_mask:0xf bank_mask:0x3")
        for j in range(4):
            a.e(f"v_add_f32_dpp v{vS+j}, v{vS+j+4}, v{vS+j+4} row_ror:8 row_mask:0xf bank_mask:0xc")
        for j in range(2):
            a.e(f"v_add_f32_dpp v{vS+j}, v{vS+j}, v{vS+j} row_half_mirror row_mask:0xf bank_mask:0x5")
        for j in range(2):
            a.e(f"v_add_f32_dpp v{vS+j}, v{vS+j+2}, v{vS+j+2} row_half_mirror row_mask:0xf bank_mask:0xa")
        a.e("s_nop 0")
        for j in range(2):
            a.e(f"v_add_f32_dpp v{vS+j}, v{vS+j}, v{vS+j} quad_perm:[1,0,3,2] {FULL}")
        a.e("s_nop 0")
        a.e(f"v_cndmask_b32 v{vT}, v{vS}, v{vS+1}, {sr(sPAR,2)}")
        a.e("s_nop 1")
        a.e(f"v_add_f32_dpp v{vT}, v{vT}, v{vT} quad_perm:[2,3,0,1] {FULL}")
        a.e(f"v_mul_f32 v{vT}, s{sC}, v{vT}")
        a.e("s_nop 1")
        a.e(f"v_max_f32_dpp v{vT+1}, v{vT}, v{vT} quad_perm:[1,0,3,2] {FULL}")
        a.e("s_nop 1")
        a.e(f"v_max_f32_dpp v{vT+1}, v{vT+1}, v{vT+1} row_ror:4 {FULL}")
        a.e("s_nop 1")
        a.e(f"v_max_f32_dpp v{vT+1}, v{vT+1}, v{vT+1} row_ror:8 {FULL}")
        a.e(f"v_max_f32 v{vT+1}, v{vT+1}, v{vM}")
        a.e(f"v_sub_f32 v{vAl}, v{vM}, v{vT+1}")
        a.e(f"v_sub_f32 v{vT}, v{vT}, v{vT+1}")
        a.e(f"v_exp_f32 v{vAl}, v{vAl}")
        a.e(f"v_exp_f32 v{vT}, v{vT}")
        a.e(f"v_mov_b32 v{vM}, v{vT+1}")
        a.e(f"v_cvt_pk_bf16_f32 v{vPlo}, v{vT}, 0")
        a.e(f"v_cvt_pk_bf16_f32 v{vPhi}, 0, v{vT}")
        a.e(f"v_fma_f32 v{vL}, v{vL}, v{vAl}, v{vT}")
        for k in range(8):
            a.e(f"v_mul_f32 v{vO+k}, v{vAl}, v{vO+k}")
        if opt.nocomp & 2: del a.lines[mark:]
        for j in range(8):
            a.wait_vm(f"t{t}n{8+j}")
            issue_upto(16*t + 8 + j + la_at(16*t + 8 + j))
            for d in range(4 if not (opt.nocomp & 4) else 0):
                a.e(f"v_dot2c_f32_bf16_dpp v{vO+2*d}, v{vPlo}, v{vVb+4*j+d} row_newbcast:{pos(j)} {FULL}")
                a.e(f"v_dot2c_f32_bf16_dpp v{vO+2*d+1}, v{vPhi}, v{vVb+4*j+d} row_newbcast:{pos(j)} {FULL}")
        if opt.wo and 1 <= t <= 8:
            wo_perm(t - 1)
    stamp(5)
    a.c("in-wave combine of the 4 lane rows")
    a.e(f"v_mov_b32 v{vT+2}, v{vM}")
    allred_rows(a, vT+2, vT, vT+1, "v_max_f32")
    a.e(f"v_sub_f32 v{vAl}, v{vM}, v{vT+2}")
    a.e(f"v_exp_f32 v{vAl}, v{vAl}")
    a.e(f"v_mov_b32 v{vM}, v{vT+2}")
    a.e(f"v_mul_f32 v{vL}, v{vAl}, v{vL}")
    for k in range(8):
        a.e(f"v_mul_f32 v{vO+k}, v{vAl}, v{vO+k}")
    a.e(f"v_add_f32_dpp v{vL}, v{vL}, v{vL} quad_perm:[1,0,3,2] {FULL}")
    a.e(f"s_lshl_b32 s{sT0}, s{sW}, 9")
    a.e(f"v_add_u32 v{vT+2}, s{sT0}, v{vA0}")
    a.e(f"v_add_f32_dpp v{vL}, v{vL}, v{vL} quad_perm:[2,3,0,1] {FULL}")
    reduce_scatter8(a, vO)
    a.e(f"ds_write_b64 v{vT+2}, {vr(vO,2)} offset:{LDS_OP}")
    a.e(f"v_add_f32_dpp v{vL}, v{vL}, v{vL} row_ror:4 {FULL}")
    a.e(f"s_lshl_b32 s{sT0}, s{sW}, 3")
    a.e(f"v_mov_b32 v{vT+2}, s{sT0}")
    a.e(f"v_add_f32_dpp v{vL}, v{vL}, v{vL} row_ror:8 {FULL}")
    allred_rows(a, vL, vT, vT+1, "v_add_f32")
    a.e(f"v_mul_f32 v{vL}, 0.5, v{vL}")
    a.e(f"ds_write_b64 v{vT+2}, {vr(vM,2)} offset:{LDS_ML}")
    a.e("s_waitcnt lgkmcnt(0)")
    a.e("s_barrier")
    stamp(6)
    a.c("cross-wave combine: lane = (w' = l>>3, p = l&7) reads dims 16w+2p, +1 of wave w'")
    a.e(f"v_lshrrev_b32 v{vT}, 3, v{vLane}")
    a.e(f"v_and_b32 v{vT+1}, 7, v{vLane}")
    a.e(f"v_lshlrev_b32 v{vT+1}, 3, v{vT+1}")
    a.e(f"v_lshl_add_u32 v{vT+1}, v{vT}, 9, v{vT+1}")
    a.e(f"s_lshl_b32 s{sT0}, s{sW}, 6")
    a.e(f"v_add_u32 v{vT+1}, s{sT0}, v{vT+1}")
    a.e(f"v_lshlrev_b32 v{vT}, 3, v{vT}")
    a.e(f"ds_read_b64 {vr(vM,2)}, v{vT} offset:{LDS_ML}")
    a.e(f"ds_read_b64 {vr(vO,2)}, v{vT+1} offset:{LDS_OP}")
    for k in range(8):
        a.e(f"v_mov_b32 v{vS+k}, 0")
    a.e("s_waitcnt lgkmcnt(1)")
    a.e(f"v_max_f32_dpp v{vAl}, v{vM}, v{vM} row_ror:8 {FULL}")
    allred_rows(a, vAl, vT, vT+1, "v_max_f32")
    a.e(f"v_sub_f32 v{vT+2}, v{vM}, v{vAl}")
    a.e(f"v_exp_f32 v{vT+2}, v{vT+2}")
    a.e(f"v_mov_b32 v{vM}, v{vAl}")
    a.e("s_waitcnt lgkmcnt(0)")
    a.e(f"v_mul_f32 v{vO}, v{vT+2}, v{vO}")
    a.e(f"v_mul_f32 v{vO+1}, v{vT+2}, v{vO+1}")
    a.e(f"v_mul_f32 v{vL}, v{vT+2}, v{vL}")
    a.e("s_nop 0")
    for r_ in (vO, vO+1, vL):
        a.e(f"v_add_f32_dpp v{r_}, v{r_}, v{r_} row_ror:8 {FULL}")
    allred_rows(a, vO, vT, vT+1, "v_add_f32")
    allred_rows(a, vO+1, vT+2, vT+3, "v_add_f32")
    a.e(f"v_cvt_pk_bf16_f32 v{vPlo}, v{vO}, v{vO+1}")
    a.c("projection through this wave's 16 rows of wo (pre-permuted into row pairs)")
    a.e(f"s_lshl_b32 s{sT0}, s{sW}, 11")
    a.e(f"v_lshlrev_b32 v{vA1}, 5, v{vLane}")
    a.e(f"v_add_u32 v{vA1}, s{sT0}, v{vA1}")
    for p in range(8):
        for d in range(4):
            r0 = vWQ + 8*p + d
            r1 = vWQ + 8*p + 4 + d
            a.e(f"v_dot2c_f32_bf16_dpp v{vS+2*d}, v{vPlo}, v{r0} row_newbcast:{p} {FULL}")
            a.e(f"v_dot2c_f32_bf16_dpp v{vS+2*d+1}, v{vPlo}, v{r1} row_newbcast:{p} {FULL}")
    allred_rows(a, vL, vT, vT+1, "v_add_f32")
    a.e(f"ds_write_b128 v{vA1}, {vr(vS,4)} offset:{LDS_YP}")
    a.e(f"ds_write_b128 v{vA1}, {vr(vS+4,4)} offset:{LDS_YP+16}")
    a.e("s_waitcnt lgkmcnt(0)")
    a.e("s_barrier")
    stamp(7)
    a.c("waves 0,1: sum the 8 partial rows (4 columns per lane) and publish")
    a.e(f"s_cmp_ge_u32 s{sW}, 2")
    a.e("s_cbranch_scc1 L_stream_done")
    a.e(f"v_lshlrev_b32 v{vT}, 4, v0")
    for x in range(8):
        a.e(f"ds_read_b128 {vr(vWQ+4*x,4)}, v{vT} offset:{LDS_YP + x*2048}")
    a.e(f"s_mul_i32 s{sT0}, s{sIDX}, {YROW}")
    a.e(f"s_add_u32 s{sT2}, s{sT0}, 2048")
    a.e("s_waitcnt lgkmcnt(4)")
    for k in range(4):
        a.e(f"v_add_f32 v{vWQ+k}, v{vWQ+k}, v{vWQ+4+k}")
        a.e(f"v_add_f32 v{vWQ+8+k}, v{vWQ+8+k}, v{vWQ+12+k}")
    a.e("s_waitcnt lgkmcnt(0)")
    for k in range(4):
        a.e(f"v_add_f32 v{vWQ+16+k}, v{vWQ+16+k}, v{vWQ+20+k}")
        a.e(f"v_add_f32 v{vWQ+24+k}, v{vWQ+24+k}, v{vWQ+28+k}")
    for k in range(4):
        a.e(f"v_add_f32 v{vWQ+k}, v{vWQ+k}, v{vWQ+8+k}")
        a.e(f"v_add_f32 v{vWQ+16+k}, v{vWQ+16+k}, v{vWQ+24+k}")
    for k in range(4):
        a.e(f"v_add_f32 v{vWQ+k}, v{vWQ+k}, v{vWQ+16+k}")
    a.e(f"buffer_store_dwordx4 {vr(vWQ,4)}, v{vT}, {sr(sWS,4)}, s{sT0} offen sc1")
    a.e(f"v_cmp_eq_u32 vcc, 0, v0")
    a.e(f"s_and_saveexec_b64 {sr(sEX,2)}, vcc")
    a.e("s_cbranch_execz L_no_ml")
    a.e(f"v_mov_b32 v{vT+1}, 0")
    a.e(f"buffer_store_dwordx2 {vr(vM,2)}, v{vT+1}, {sr(sWS,4)}, s{sT2} offen sc1")
    a.label("L_no_ml")
    a.e(f"s_mov_b64 exec, {sr(sEX,2)}")
    a.label("L_stream_done")
    if opt.stamps:
        stamp(8)
        a.e("s_waitcnt vmcnt(0)")
        stamp(9)
        dump_stamps(vT, vS, vLane, 10)
    a.e("s_endpgm")

    a.vmq = []
    a.raw(".p2align 6")
    a.label("L_aux")
    uX = 2
    uAcc = 18
    uT = 26
    uW = 40
    uZ = 104
    uML = 112
    uG, uG1, uB2, uOff, uH2, uNeg, uEp = 116, 117, 118, 119, 120, 121, 122
    if opt.pf:
        a.c("warm L2 with this kernel's code (instruction fetch misses then stop at L2)")
        a.e("s_getpc_b64 s[70:71]")
        a.label("L_pc")
        a.e(f"s_sub_u32 s70, s70, L_pc-{K1}")
        a.e("s_subb_u32 s71, s71, 0")
        a.e(f"v_lshlrev_b32 v26, 7, v{vLane}")
        a.e(f"s_mov_b32 s{sT0}, L_code_end-{K1}-4")
        for x in range(opt.pf):
            a.e(f"v_min_u32 v27, s{sT0}, v26")
            a.e(f"v_and_b32 v27, 0xfffffffc, v27")
            a.e(f"global_load_dword v{128+x}, v27, s[70:71]")
            a.e(f"v_add_u32 v26, 0x2000, v26")
    a.e("s_waitcnt lgkmcnt(0)")
    a.e("s_load_dwordx4 s[8:11], s[0:1], 72")
    a.e("s_load_dwordx4 s[12:15], s[0:1], 88")
    a.e("s_waitcnt lgkmcnt(0)")
    srd(a, sX, 4, None, "0x1000")
    srd(a, sWS, 22, None, f"0x{WS_SIZE:x}")
    srd(a, sDBG, 14, None, "256")
    a.e(f"v_mov_b32 v26, {LDS_FLAG}")
    a.e(f"v_mov_b32 v27, 0")
    a.e(f"ds_write_b32 v26, v27")
    a.e("s_waitcnt lgkmcnt(0)")
    a.e("s_barrier")
    a.e("s_waitcnt vmcnt(0)")
    stamp(1)
    if not opt.aux:
        a.e("s_barrier")
        a.e("s_barrier")
        if opt.stamps:
            srd(a, sWS, 22, None, f"0x{WS_SIZE:x}")
            for i in range(2, 10): stamp(i)
            dump_stamps(26, 28, vLane, 10)
        a.e("s_endpgm")
    a.c("epoch of this launch = (word left in the workspace) + 1: tells this launch's flags from older ones")
    a.e(f"s_lshl_b32 s{sT0}, s{sB}, 7")
    a.e(f"s_add_u32 s{sT0}, s{sT0}, {WS_EPOCH}")
    a.e(f"v_mov_b32 v{uT+4}, 0")
    a.e(f"buffer_load_dword v{uEp}, v{uT+4}, {sr(sWS,4)}, s{sT0} offen sc1")
    a.c("clear this workgroup's y row and m/l with the 'not written' pattern")
    a.e(f"v_mov_b32 v{uT}, -1")
    a.e(f"v_mov_b32 v{uT+1}, -1")
    a.e(f"v_mov_b32 v{uT+2}, -1")
    a.e(f"v_mov_b32 v{uT+3}, -1")
    a.e(f"v_lshlrev_b32 v{uOff}, 4, v{vLane}")
    a.e(f"s_mul_i32 s{sT0}, s{sIDX}, {YROW}")
    if opt.axoff & 4: a.e(f"s_mov_b32 s{sWS+2}, 0")
    a.e(f"buffer_store_dwordx4 {vr(uT,4)}, v{uOff}, {sr(sWS,4)}, s{sT0} offen sc1")
    a.e(f"buffer_store_dwordx4 {vr(uT,4)}, v{uOff}, {sr(sWS,4)}, s{sT0} offen offset:1024 sc1")
    a.e(f"v_cmp_gt_u32 vcc, 8, v{vLane}")
    a.e(f"s_and_saveexec_b64 {sr(sEX,2)}, vcc")
    a.e(f"buffer_store_dwordx4 {vr(uT,4)}, v{uOff}, {sr(sWS,4)}, s{sT0} offen offset:2048 sc1")
    a.e(f"s_mov_b64 exec, {sr(sEX,2)}")
    a.c("FFN stage 1: 32 hidden units (8 per lane group c = lane&3), rows 32rr..32rr+31 with rr = lane>>2")
    a.e(f"s_min_u32 s{sT3}, s{sU}, 55")
    a.e(f"s_lshl_b32 s{sT0}, s{sT3}, 6")
    srd(a, sW1, 16, sT0, "0x1c0000")
    a.e(f"s_sub_u32 s{sW1+2}, s{sW1+2}, s{sT0}")
    a.e(f"s_lshl_b32 s{sT0}, s{sT3}, 15")
    srd(a, sW2, 20, sT0, "0x8000")
    a.e(f"s_cmp_ge_u32 s{sU}, 56")
    a.e(f"s_cselect_b32 s{sW1+2}, 0, s{sW1+2}")
    a.e(f"s_cselect_b32 s{sW2+2}, 0, s{sW2+2}")
    if opt.axoff & 1: a.e(f"s_mov_b32 s{sW1+2}, 0")
    if opt.axoff & 2: a.e(f"s_mov_b32 s{sW2+2}, 0")
    a.e(f"v_lshrrev_b32 v{uT}, 2, v{vLane}")
    a.e(f"v_lshlrev_b32 v{uT+1}, 6, v{uT}")
    a.e(f"s_lshl_b32 s{sT1}, s{sB}, 10")
    for x in range(4):
        a.vmem(f"buffer_load_dwordx4 {vr(uX+4*x,4)}, v{uT+1}, {sr(sX,4)}, s{sT1} offen offset:{16*x}", "xf")
    a.e(f"s_mov_b32 s{sT0}, {32*3584}")
    a.e(f"v_mul_lo_u32 v{uT+2}, s{sT0}, v{uT}")
    a.e(f"v_and_b32 v{uT+3}, 3, v{vLane}")
    a.e(f"v_lshl_add_u32 v{uT+2}, v{uT+3}, 4, v{uT+2}")
    for k in range(8):
        a.e(f"v_mov_b32 v{uAcc+k}, 0")
    WIN = opt.auxwin
    def ffn_stream(nload, mk_load, consume):
        issued_ = 0
        for p in range(nload // 2):
            while issued_ < min(nload, 2*p + 2 + WIN):
                a.vmem(mk_load(issued_), f"aux{issued_}")
                issued_ += 1
            a.wait_vm(f"aux{2*p+1}")
            consume(p)
    def w1_load(j):
        a.e(f"s_mov_b32 s{sT2}, {j*3584}")
        return f"buffer_load_dwordx4 {vr(uW+4*(j&15),4)}, v{uT+2}, {sr(sW1,4)}, s{sT2} offen{wpol}"
    def w1_use(p):
        j = (2*p) & 15
        for d in range(4):
            r0 = uW + 4*j + d; r1 = r0 + 4
            a.e(f"v_perm_b32 v{uT+4}, v{r1}, v{r0}, s{sPLO}")
            a.e(f"v_perm_b32 v{uT+5}, v{r1}, v{r0}, s{sPHI}")
            a.e(f"v_dot2c_f32_bf16 v{uAcc+2*d}, v{uT+4}, v{uX+p}")
            a.e(f"v_dot2c_f32_bf16 v{uAcc+2*d+1}, v{uT+5}, v{uX+p}")
    assert WIN + 2 <= 16
    ffn_stream(32, w1_load, w1_use)
    a.e("s_nop 2")
    reduce_scatter8(a, uAcc)
    a.e("s_nop 1")
    for k in range(2):
        a.e(f"v_add_f32_dpp v{uAcc+k}, v{uAcc+k}, v{uAcc+k} row_ror:8 {FULL}")
    a.e("s_nop 0")
    for k in range(2):
        a.e(f"v_add_f32_dpp v{uAcc+k}, v{uAcc+k}, v{uAcc+k} row_ror:4 {FULL}")
    a.c("lane (g, c): units 8c+2g, 8c+2g+1.  h = bf16(bf16(sum) + b1); h2 = bf16(relu(h)^2)")
    a.e(f"s_lshl_b32 s{sT0}, s{sT3}, 6")
    srd(a, sW1, 18, sT0, "64")
    a.e(f"v_lshrrev_b32 v{uT}, 4, v{vLane}")
    a.e(f"v_lshlrev_b32 v{uT}, 2, v{uT}")
    a.e(f"v_and_b32 v{uT+1}, 3, v{vLane}")
    a.e(f"v_lshl_add_u32 v{uT}, v{uT+1}, 4, v{uT}")
    a.vmem(f"buffer_load_dword v{uT+1}, v{uT}, {sr(sW1,4)}, 0 offen", "b1")
    a.e(f"v_cvt_pk_bf16_f32 v{uT+2}, v{uAcc}, v{uAcc+1}")
    a.e(f"v_lshlrev_b32 v{uAcc}, 16, v{uT+2}")
    a.e(f"v_and_b32 v{uAcc+1}, 0xffff0000, v{uT+2}")
    a.wait_vm("b1")
    a.e(f"v_lshlrev_b32 v{uT+2}, 16, v{uT+1}")
    a.e(f"v_and_b32 v{uT+3}, 0xffff0000, v{uT+1}")
    a.e(f"v_add_f32 v{uAcc}, v{uAcc}, v{uT+2}")
    a.e(f"v_add_f32 v{uAcc+1}, v{uAcc+1}, v{uT+3}")
    a.e(f"v_cvt_pk_bf16_f32 v{uT+2}, v{uAcc}, v{uAcc+1}")
    a.e(f"v_lshlrev_b32 v{uAcc}, 16, v{uT+2}")
    a.e(f"v_and_b32 v{uAcc+1}, 0xffff0000, v{uT+2}")
    a.e(f"v_max_f32 v{uAcc}, 0, v{uAcc}")
    a.e(f"v_max_f32 v{uAcc+1}, 0, v{uAcc+1}")
    a.e(f"v_mul_f32 v{uAcc}, v{uAcc}, v{uAcc}")
    a.e(f"v_mul_f32 v{uAcc+1}, v{uAcc+1}, v{uAcc+1}")
    a.e(f"v_cvt_pk_bf16_f32 v{uH2}, v{uAcc}, v{uAcc+1}")
    a.c("FFN stage 2: rows 32u..32u+31 of w2, lane = 8 columns")
    a.e(f"v_lshlrev_b32 v{uT+2}, 4, v{vLane}")
    for k in range(8):
        a.e(f"v_mov_b32 v{uAcc+k}, 0")
    def w2_load(j):
        a.e(f"s_mov_b32 s{sT2}, {(j>>2)*4096}")
        return f"buffer_load_dwordx4 {vr(uW+4*(j&15),4)}, v{uT+2}, {sr(sW2,4)}, s{sT2} offen offset:{(j&3)*1024}{wpol}"
    def w2_use(p):
        c_, g_ = p >> 2, p & 3
        a.e(f"v_readlane_b32 s{sT0}, v{uH2}, {16*g_ + c_}")
        j = (2*p) & 15
        for d in range(4):
            r0 = uW + 4*j + d; r1 = r0 + 4
            a.e(f"v_perm_b32 v{uT+4}, v{r1}, v{r0}, s{sPLO}")
            a.e(f"v_perm_b32 v{uT+5}, v{r1}, v{r0}, s{sPHI}")
            a.e(f"v_dot2c_f32_bf16 v{uAcc+2*d}, s{sT0}, v{uT+4}")
            a.e(f"v_dot2c_f32_bf16 v{uAcc+2*d+1}, s{sT0}, v{uT+5}")
    ffn_stream(32, w2_load, w2_use)
    a.e(f"s_lshl_b32 s{sT0}, s{sIDX}, 11")
    a.e(f"s_add_u32 s{sT1}, s{sT0}, {WS_Z}")
    a.e("s_nop 1")
    a.c("FFN partial row, stored as [half][lane][4]; once it and the cleared y row are acknowledged, raise the ready flag")
    a.e(f"buffer_store_dwordx4 {vr(uAcc,4)}, v{uOff}, {sr(sWS,4)}, s{sT1} offen sc1")
    a.e(f"buffer_store_dwordx4 {vr(uAcc+4,4)}, v{uOff}, {sr(sWS,4)}, s{sT1} offen offset:1024 sc1")
    a.e(f"s_lshl_b32 s{sT0}, s{sIDX}, 7")
    a.e(f"s_add_u32 s{sT0}, s{sT0}, {WS_FLAG}")
    a.e(f"v_mov_b32 v{uT+4}, 0")
    a.e("s_waitcnt vmcnt(0)")
    a.e(f"v_add_u32 v{uEp}, 1, v{uEp}")
    a.e(f"v_cmp_eq_u32 vcc, 0, v{vLane}")
    a.e(f"s_and_saveexec_b64 {sr(sEX,2)}, vcc")
    a.e(f"buffer_store_dword v{uEp}, v{uT+4}, {sr(sWS,4)}, s{sT0} offen sc1")
    a.e(f"s_mov_b64 exec, {sr(sEX,2)}")
    if opt.axoff & 4: a.e(f"s_mov_b32 s{sWS+2}, 0x{WS_SIZE:x}")
    stamp(2)
    a.c("gate: g = bf16(sigmoid(bf16(sum bf16(x*w))))")
    a.e(f"v_lshlrev_b32 v{uT}, 4, v{vLane}")
    srd(a, sW1, 10, None, "1024")
    a.e(f"s_lshl_b32 s{sT1}, s{sB}, 10")
    a.e(f"buffer_load_dwordx4 {vr(uW,4)}, v{uT}, {sr(sX,4)}, s{sT1} offen")
    a.e(f"buffer_load_dwordx4 {vr(uW+4,4)}, v{uT}, {sr(sW1,4)}, 0 offen")
    a.c("b2 of this lane's output column: column = 2g + (i >= 8)")
    a.e(f"s_lshl_b32 s{sT0}, s{sU}, 4")
    srd(a, sW2, 8, sT0, "16")
    a.e(f"v_lshrrev_b32 v{uT+1}, 4, v{vLane}")
    a.e(f"v_lshlrev_b32 v{uT+1}, 2, v{uT+1}")
    a.e(f"v_bfe_u32 v{uT+2}, v{vLane}, 3, 1")
    a.e(f"v_lshl_add_u32 v{uNeg}, v{uT+2}, 1, v{uT+1}")
    a.e(f"buffer_load_ushort v{uB2}, v{uNeg}, {sr(sW2,4)}, 0 offen")
    a.e("s_waitcnt vmcnt(1)")
    a.e(f"v_mov_b32 v{uG}, 0")
    for d in range(4):
        a.e(f"v_lshlrev_b32 v{uT}, 16, v{uW+d}")
        a.e(f"v_and_b32 v{uT+1}, 0xffff0000, v{uW+d}")
        a.e(f"v_lshlrev_b32 v{uT+2}, 16, v{uW+4+d}")
        a.e(f"v_and_b32 v{uT+3}, 0xffff0000, v{uW+4+d}")
        a.e(f"v_mul_f32 v{uT}, v{uT}, v{uT+2}")
        a.e(f"v_mul_f32 v{uT+1}, v{uT+1}, v{uT+3}")
        a.e(f"v_cvt_pk_bf16_f32 v{uT}, v{uT}, v{uT+1}")
        a.e(f"v_lshlrev_b32 v{uT+1}, 16, v{uT}")
        a.e(f"v_and_b32 v{uT}, 0xffff0000, v{uT}")
        a.e(f"v_add_f32 v{uG}, v{uG}, v{uT+1}")
        a.e(f"v_add_f32 v{uG}, v{uG}, v{uT}")
    def dpp_allred16(reg):
        for m in ("quad_perm:[1,0,3,2]", "quad_perm:[2,3,0,1]", "row_ror:4", "row_ror:8"):
            a.e("s_nop 1")
            a.e(f"v_add_f32_dpp v{reg}, v{reg}, v{reg} {m} {FULL}")
    dpp_allred16(uG)
    allred_rows(a, uG, uT, uT+1, "v_add_f32")
    def rbf(reg):
        a.e(f"v_cvt_pk_bf16_f32 v{reg}, v{reg}, v{reg}")
        a.e(f"v_lshlrev_b32 v{reg}, 16, v{reg}")
    rbf(uG)
    a.e(f"v_mul_f32 v{uG}, 0xbfb8aa3b, v{uG}")
    a.e(f"v_exp_f32 v{uG}, v{uG}")
    a.e("s_nop 0")
    a.e(f"v_add_f32 v{uG}, 1.0, v{uG}")
    a.e(f"v_rcp_f32 v{uG}, v{uG}")
    a.e("s_nop 0")
    rbf(uG)
    a.e(f"v_sub_f32 v{uG1}, 1.0, v{uG}")
    rbf(uG1)
    a.c("idle until the streaming waves are half way")
    a.e(f"s_mov_b32 s{sCNT}, {opt.spin}")
    a.e(f"v_mov_b32 v{uT+4}, {LDS_FLAG}")
    a.label("L_flag_poll")
    a.e(f"ds_read_b32 v{uT}, v{uT+4}")
    a.e("s_waitcnt lgkmcnt(0)")
    a.e(f"v_readfirstlane_b32 s{sT0}, v{uT}")
    a.e(f"s_cmp_eq_u32 s{sT0}, 1")
    a.e("s_cbranch_scc1 L_flag_ok")
    a.e("s_sleep 64")
    a.e(f"s_sub_u32 s{sCNT}, s{sCNT}, 1")
    a.e(f"s_cmp_lg_u32 s{sCNT}, 0")
    a.e("s_cbranch_scc1 L_flag_poll")
    a.label("L_flag_ok")
    a.c("wait for the ready flags of the 64 workgroups of this batch (lane = workgroup)")
    a.e(f"s_mov_b32 s{sCNT}, {opt.spin}")
    a.e(f"s_lshl_b32 s{sT1}, s{sB}, 13")
    a.e(f"s_add_u32 s{sT1}, s{sT1}, {WS_FLAG}")
    a.e(f"v_lshlrev_b32 v{uT+4}, 7, v{vLane}")
    a.label("L_rdy_poll")
    a.e(f"buffer_load_dword v{uT}, v{uT+4}, {sr(sWS,4)}, s{sT1} offen sc1")
    a.e("s_waitcnt vmcnt(0)")
    a.e(f"v_cmp_ne_u32 vcc, v{uT}, v{uEp}")
    a.e("s_nop 4")
    a.e("s_cbranch_vccz L_rdy_ok")
    a.e("s_sleep 32")
    a.e(f"s_sub_u32 s{sCNT}, s{sCNT}, 1")
    a.e(f"s_cmp_lg_u32 s{sCNT}, 0")
    a.e("s_cbranch_scc1 L_rdy_poll")
    a.label("L_rdy_ok")
    def reduce64_8(base):
        reduce_scatter8(a, base)
        a.e("s_nop 1")
        a.e(f"v_add_f32_dpp v{base}, v{base}, v{base} row_ror:8 row_mask:0xf bank_mask:0x3")
        a.e(f"v_add_f32_dpp v{base}, v{base+1}, v{base+1} row_ror:8 row_mask:0xf bank_mask:0xc")
        for m in ("row_half_mirror", "quad_perm:[1,0,3,2]", "quad_perm:[2,3,0,1]"):
            a.e("s_nop 1")
            a.e(f"v_add_f32_dpp v{base}, v{base}, v{base} {m} {FULL}")
    def poll(label, srd_, regs, loads, sleep):
        a.e(f"s_mov_b32 s{sCNT}, {1 if opt.axoff & 8 else opt.spin}")
        a.label(label)
        for l in loads:
            a.e(l)
        a.e("s_waitcnt vmcnt(0)")
        a.e(f"v_max3_u32 v{uT}, v{regs[0]}, v{regs[1]}, v{regs[2]}")
        rest = regs[3:]
        while rest:
            if len(rest) >= 2:
                a.e(f"v_max3_u32 v{uT}, v{uT}, v{rest[0]}, v{rest[1]}"); rest = rest[2:]
            else:
                a.e(f"v_max_u32 v{uT}, v{uT}, v{rest[0]}"); rest = rest[1:]
        a.e(f"v_cmp_eq_u32 vcc, -1, v{uT}")
        a.e("s_nop 4")
        a.e(f"s_cbranch_vccz {label}_ok")
        if sleep: a.e(f"s_sleep {sleep}")
        a.e(f"s_sub_u32 s{sCNT}, s{sCNT}, 1")
        a.e(f"s_cmp_lg_u32 s{sCNT}, 0")
        a.e(f"s_cbranch_scc1 {label}")
        a.label(label + "_ok")
    a.c("gather the FFN partial rows of this batch: lane = row, 8 columns of group u")
    a.e(f"s_lshl_b32 s{sT0}, s{sB}, 17")
    a.e(f"s_lshl_b32 s{sT1}, s{sU}, 4")
    a.e(f"s_add_u32 s{sT2}, s{sT0}, s{sT1}")
    a.e(f"s_add_u32 s{sT2}, s{sT2}, {WS_Z}")
    srd(a, sW1, 22, sT2, f"{56*2048}")
    a.e(f"s_sub_u32 s{sW1+2}, s{sW1+2}, s{sT1}")
    a.e(f"s_mul_i32 s{sT0}, s{sB}, {64*YROW}")
    srd(a, sW2, 22, sT0, f"{64*YROW}")
    a.e(f"v_lshlrev_b32 v{uOff}, 11, v{vLane}")
    a.e(f"buffer_load_dwordx4 {vr(uZ,4)}, v{uOff}, {sr(sW1,4)}, 0 offen sc1")
    a.e(f"buffer_load_dwordx4 {vr(uZ+4,4)}, v{uOff}, {sr(sW1,4)}, 0 offen offset:1024 sc1")
    a.e("s_waitcnt vmcnt(0)")
    reduce64_8(uZ)
    rbf(uZ)
    a.e(f"v_lshlrev_b32 v{uB2}, 16, v{uB2}")
    a.e(f"v_add_f32 v{uZ}, v{uZ}, v{uB2}")
    rbf(uZ)
    a.e(f"v_mul_f32 v{uG1}, v{uG1}, v{uZ}")
    rbf(uG1)
    a.e(f"s_lshl_b32 s{sT0}, s{sB}, 10")
    a.e(f"s_lshl_b32 s{sT1}, s{sU}, 4")
    a.e(f"s_add_u32 s{sT0}, s{sT0}, s{sT1}")
    srd(a, sOUT, 12, sT0, "16")
    a.e(f"s_mov_b32 s{sT0}, {YROW}")
    a.e(f"v_mul_lo_u32 v{uT+6}, s{sT0}, v{vLane}")
    a.e(f"s_lshl_b32 s{sT3}, s{sU}, 5")
    stamp(3)
    a.e("s_barrier")
    a.e("s_barrier")
    stamp(4)
    a.c("wait for the m/l pairs of this batch (4 lines), then gather the attention partial rows")
    yv = uW
    if opt.mlpoll:
        poll("L_ml_poll", sW2, [yv+8, yv+9, yv+9],
             [f"buffer_load_dwordx2 {vr(yv+8,2)}, v{uT+6}, {sr(sW2,4)}, 0 offen offset:2048 sc1"], opt.ysleep)
    poll("L_y_poll", sW2, list(range(yv, yv+10)),
         [f"buffer_load_dwordx4 {vr(yv,4)}, v{uT+6}, {sr(sW2,4)}, s{sT3} offen sc1",
          f"buffer_load_dwordx4 {vr(yv+4,4)}, v{uT+6}, {sr(sW2,4)}, s{sT3} offen offset:16 sc1",
          f"buffer_load_dwordx2 {vr(yv+8,2)}, v{uT+6}, {sr(sW2,4)}, 0 offen offset:2048 sc1"], opt.ysleep)
    stamp(5)
    m_, l_ = yv+8, yv+9
    a.e(f"v_mov_b32_dpp v{uT}, v{m_} quad_perm:[1,0,3,2] {FULL}")
    a.e(f"v_mov_b32_dpp v{uT+1}, v{l_} quad_perm:[1,0,3,2] {FULL}")
    a.e(f"v_max_f32 v{uT+2}, v{m_}, v{uT}")
    a.e(f"v_sub_f32 v{uT+3}, v{m_}, v{uT+2}")
    a.e(f"v_sub_f32 v{uT}, v{uT}, v{uT+2}")
    a.e(f"v_exp_f32 v{uT+3}, v{uT+3}")
    a.e(f"v_exp_f32 v{uT}, v{uT}")
    a.e("s_nop 0")
    a.e(f"v_mul_f32 v{uT+2}, v{uT+3}, v{l_}")
    a.e(f"v_fma_f32 v{uT+2}, v{uT}, v{uT+1}, v{uT+2}")
    a.e(f"v_rcp_f32 v{uT+2}, v{uT+2}")
    a.e("s_nop 0")
    a.e(f"v_mul_f32 v{uT+2}, v{uT+2}, v{uT+3}")
    for k in range(8):
        a.e(f"v_mul_f32 v{yv+k}, v{uT+2}, v{yv+k}")
    a.e("s_nop 1")
    reduce64_8(yv)
    rbf(yv)
    a.e(f"v_mul_f32 v{yv}, v{uG}, v{yv}")
    rbf(yv)
    a.e(f"v_add_f32 v{yv}, v{yv}, v{uG1}")
    a.e(f"v_cvt_pk_bf16_f32 v{yv}, v{yv}, v{yv}")
    a.e(f"v_and_b32 v{uT}, 7, v{vLane}")
    a.e(f"v_cmp_eq_u32 vcc, 0, v{uT}")
    a.e(f"s_and_saveexec_b64 {sr(sEX,2)}, vcc")
    a.e(f"buffer_store_short v{yv}, v{uNeg}, {sr(sOUT,4)}, 0 offen")
    a.c("every workgroup of this batch has read the epoch word long ago: leave the new value for the next launch")
    a.e(f"s_cmp_lg_u32 s{sU}, 0")
    a.e("s_cbranch_scc1 L_no_epoch")
    a.e(f"s_lshl_b32 s{sT0}, s{sB}, 7")
    a.e(f"s_add_u32 s{sT0}, s{sT0}, {WS_EPOCH}")
    a.e(f"v_mov_b32 v{uT+4}, 0")
    a.e(f"buffer_store_dword v{uEp}, v{uT+4}, {sr(sWS,4)}, s{sT0} offen sc1")
    a.label("L_no_epoch")
    if opt.stamps:
        a.e(f"s_mov_b64 exec, {sr(sEX,2)}")
        stamp(6)
        a.e("s_waitcnt vmcnt(0)")
        for i in (7, 8, 9): stamp(i)
        dump_stamps(uT, uT+2, vLane, 10)
    a.label("L_end")
    a.e("s_endpgm")
    a.label("L_code_end")

    out = HEADER
    out += f"; @launch grid=(256,1,1) block=(576,1,1) lds={LDS_SIZE}\n"
    out += '.amdgcn_target "amdgcn-amd-amdhsa--gfx950"\n.text\n' + a.text()
    out += f""".section .rodata,"a"
.p2align 6
.amdhsa_kernel {K1}
  .amdhsa_next_free_vgpr {NV}
  .amdhsa_next_free_sgpr 102
  .amdhsa_accum_offset {NV}
  .amdhsa_group_segment_fixed_size 0
  .amdhsa_kernarg_size 112
  .amdhsa_user_sgpr_count 2
  .amdhsa_user_sgpr_kernarg_segment_ptr 1
  .amdhsa_system_sgpr_workgroup_id_x 1
  .amdhsa_float_denorm_mode_32 3
.end_amdhsa_kernel
"""
    return out

def main():
    ap = argparse.ArgumentParser()
    ap.add_argument("-o", default="-")
    ap.add_argument("--policy", default="nt")
    ap.add_argument("--wpolicy", default="")
    ap.add_argument("--stamps", action="store_true")
    ap.add_argument("--la", type=float, default=3)
    ap.add_argument("--p0", type=int, default=6)
    ap.add_argument("--rot", type=int, default=1)
    ap.add_argument("--wo", type=int, default=1)
    ap.add_argument("--q", type=int, default=1)
    ap.add_argument("--aux", type=int, default=1)
    ap.add_argument("--nocomp", type=int, default=0)
    ap.add_argument("--map", default="hs")
    ap.add_argument("--pa", type=int, default=0)
    ap.add_argument("--pb", type=int, default=16)
    ap.add_argument("--ilv", type=int, default=2)
    ap.add_argument("--axoff", type=int, default=0)
    ap.add_argument("--pf", type=int, default=0)
    ap.add_argument("--auxwin", type=int, default=4)
    ap.add_argument("--spin", type=int, default=200000)
    ap.add_argument("--ysleep", type=int, default=4)
    ap.add_argument("--ztile", type=int, default=8)
    ap.add_argument("--mlpoll", type=int, default=1)
    opt = ap.parse_args()
    out = gen(opt)
    if opt.o == "-": sys.stdout.write(out)
    else: open(opt.o, "w").write(out)

if __name__ == "__main__":
    main()
```

```python
import sys, argparse, struct

NAME = "gated_mix__mha_block_cached__dense_activation_squared_relu__decode"
HEADER = """; Kernarg layout (112 bytes, ptrs only, base s[0:1]):
"""

class Asm:
    def __init__(self):
        self.lines = []
        self.vmq = []
        self.done = set()
    def e(self, s): self.lines.append("    " + s)
    def c(self, s): self.lines.append("    ; " + s)
    def label(self, l): self.lines.append(l + ":")
    def raw(self, s): self.lines.append(s)
    def vmem(self, s, tag):
        self.e(s); self.vmq.append(tag)
    def wait_vm(self, tag):
        if tag not in self.vmq:
            assert tag in self.done, tag
            return
        idx = max(i for i, t in enumerate(self.vmq) if t == tag)
        n = len(self.vmq) - idx - 1
        assert n <= 63, n
        self.e(f"s_waitcnt vmcnt({n})")
        self.done.update(self.vmq[:idx + 1])
        self.vmq = self.vmq[idx + 1:]
    def wait_vm_all(self):
        self.e("s_waitcnt vmcnt(0)"); self.vmq = []
    def text(self): return "\n".join(self.lines) + "\n"

def vr(b, n): return f"v[{b}:{b+n-1}]"
def sr(b, n): return f"s[{b}:{b+n-1}]"
def f32bits(x): return struct.unpack("<I", struct.pack("<f", x))[0]
SCALE_LOG2E = 0.08838834764831845 * 1.4426950408889634
FULL = "row_mask:0xf bank_mask:0xf"

YROW = 2176
WS_Y = 0
WS_Z = 640 * 1024
WS_FLAG = WS_Z + 512 * 1024
WS_QX = WS_FLAG + 256 * 128
WS_EPOCH = WS_QX + 256 * 256
WS_SIZE = WS_EPOCH + 4 * 128
WS_STAMP = 2 * 1024 * 1024
assert 256 * YROW <= WS_Z

sK, sV, sWQ, sWO, sX, sW1, sW2, sWS = 24, 28, 32, 36, 40, 44, 48, 52
sH, sB, sS, sW, sU, sIDX = 56, 57, 58, 59, 60, 61
sT0, sT1, sT2, sT3 = 62, 63, 64, 65
sEX = 66
sDBG = 68
sPLO, sPHI, sC = 72, 73, 74
sCNT = 75
sPAR = 76
sOUT = 28
sST = 82

def srd(a, d, plo, off_sgpr, nrec):
    if off_sgpr is None:
        a.e(f"s_mov_b32 s{d}, s{plo}")
        a.e(f"s_and_b32 s{d+1}, s{plo+1}, 0xffff")
    else:
        a.e(f"s_add_u32 s{d}, s{plo}, s{off_sgpr}")
        a.e(f"s_addc_u32 s{d+1}, s{plo+1}, 0")
        a.e(f"s_and_b32 s{d+1}, s{d+1}, 0xffff")
    a.e(f"s_mov_b32 s{d+2}, {nrec}")
    a.e(f"s_mov_b32 s{d+3}, 0x00020000")

def reduce_scatter8(a, base):
    for k in range(4):
        a.e(f"v_permlane32_swap_b32 v{base+k}, v{base+4+k}")
    a.e("s_nop 1")
    for k in range(4):
        a.e(f"v_add_f32 v{base+k}, v{base+k}, v{base+4+k}")
    a.e("s_nop 1")
    for k in range(2):
        a.e(f"v_permlane16_swap_b32 v{base+k}, v{base+2+k}")
    a.e("s_nop 1")
    for k in range(2):
        a.e(f"v_add_f32 v{base+k}, v{base+k}, v{base+2+k}")

def allred_rows(a, reg, t0, t1, op):
    a.e(f"v_mov_b32 v{t0}, v{reg}")
    a.e(f"v_mov_b32 v{t1}, v{reg}")
    a.e("s_nop 1")
    a.e(f"v_permlane32_swap_b32 v{t0}, v{t1}")
    a.e("s_nop 1")
    a.e(f"{op} v{t0}, v{t0}, v{t1}")
    a.e(f"v_mov_b32 v{t1}, v{t0}")
    a.e("s_nop 1")
    a.e(f"v_permlane16_swap_b32 v{t0}, v{t1}")
    a.e("s_nop 1")
    a.e(f"{op} v{reg}, v{t0}, v{t1}")

def gen(opt):
    a = Asm()
    pol = (" " + opt.policy) if opt.policy else ""
    wpol = (" " + opt.wpolicy) if opt.wpolicy else ""
    LAF, P0 = opt.la, opt.p0
    LA = int(LAF)
    def la_at(g):
        fr = LAF - LA
        return LA + (1 if int((g + 1) * fr + 1e-9) > int(g * fr + 1e-9) else 0)
    assert LA <= P0 <= 16
    in_aux = [False]
    def stamp(i):
        if opt.stamps and not (opt.qdbg and in_aux[0] and 1 <= i <= 5):
            a.e(f"s_memrealtime {sr(sST+2*i,2)}")
    def qstamp(i):
        if opt.stamps and opt.qdbg:
            a.e(f"s_memrealtime {sr(sST+2*i,2)}")
    def dump_stamps(vT, vS, vLane, n):
        a.e("s_waitcnt lgkmcnt(0)")
        a.e(f"s_mov_b32 s{sWS+2}, 0x1000000")
        a.e(f"s_lshl_b32 s{sT0}, s2, 4")
        a.e(f"s_add_u32 s{sT0}, s{sT0}, s{sW}")
        a.e(f"s_lshl_b32 s{sT0}, s{sT0}, 7")
        a.e(f"s_add_u32 s{sT0}, s{sT0}, {WS_STAMP}")
        a.e(f"v_cmp_eq_u32 vcc, 0, v{vLane}")
        a.e(f"s_and_saveexec_b64 {sr(sEX,2)}, vcc")
        for i in range(n):
            a.e(f"v_mov_b32 v{vT}, {i*8}")
            a.e(f"v_mov_b32 v{vS}, s{sST+2*i}")
            a.e(f"v_mov_b32 v{vS+1}, s{sST+2*i+1}")
            a.e(f"buffer_store_dwordx2 {vr(vS,2)}, v{vT}, {sr(sWS,4)}, s{sT0} offen")
            a.e("s_nop 1")

    vLane, vK0, vK1 = 1, 2, 3
    vQ, vO, vS = 4, 8, 16
    vM, vL, vPlo, vPhi, vAl = 24, 25, 26, 27, 28
    vT = 29
    vL16, vA0, vA1 = 34, 35, 36
    vKb, vVb, vWQ = 40, 72, 104
    NV = 168
    LDS_QP, LDS_QF, LDS_OP, LDS_ML, LDS_FLAG = (0, 2048, 4096, 8192, 8320) if opt.coop else (0, 0, 4096, 8192, 8320)
    LDS_SIZE = 8448

    K1 = f"{NAME}_kernel"
    a.raw(f".globl {K1}")
    a.raw(".p2align 8")
    a.raw(f".type {K1},@function")
    a.label(K1)
    a.e("s_cmp_ge_u32 s2, 256")
    a.e("s_cbranch_scc1 L_end")
    stamp(0)
    a.e("s_load_dwordx16 s[4:19], s[0:1], 0")
    a.e("s_load_dwordx2 s[20:21], s[0:1], 64")
    a.e("s_load_dwordx2 s[22:23], s[0:1], 104")
    a.c("workgroup id -> head, batch, key half")
    a.e(f"v_lshrrev_b32 v{vT}, 6, v0")
    a.e(f"s_and_b32 s{sT0}, s2, 7")
    a.e(f"s_lshr_b32 s{sT1}, s2, 3")
    a.e(f"v_readfirstlane_b32 s{sW}, v{vT}")
    a.e(f"s_lshr_b32 s{sT2}, s{sT1}, 3")
    if opt.map == "g3":
        a.e(f"s_lshl_b32 s{sH}, s{sT0}, 2")
        a.e(f"s_add_u32 s{sH}, s{sH}, s{sT2}")
    else:
        a.e(f"s_lshl_b32 s{sH}, s{sT2}, 3")
        a.e(f"s_add_u32 s{sH}, s{sH}, s{sT0}")
    a.e(f"s_and_b32 s{sT1}, s{sT1}, 7")
    a.e(f"s_lshr_b32 s{sB}, s{sT1}, 1")
    a.e(f"s_and_b32 s{sS}, s{sT1}, 1")
    a.e(f"s_lshl_b32 s{sU}, s{sH}, 1")
    a.e(f"s_add_u32 s{sU}, s{sU}, s{sS}")
    a.e(f"s_lshl_b32 s{sIDX}, s{sB}, 6")
    a.e(f"s_add_u32 s{sIDX}, s{sIDX}, s{sU}")
    a.e(f"v_and_b32 v{vLane}, 63, v0")
    a.e(f"s_mov_b32 s{sPLO}, 0x05040100")
    a.e(f"s_mov_b32 s{sPHI}, 0x07060302")
    a.e(f"s_cmp_eq_u32 s{sW}, 8")
    a.e("s_cbranch_scc1 L_aux")

    if opt.coop:
        vWX, vXQ, vAcc = vWQ, vWQ + 8, vWQ + 12
        a.e(f"v_lshrrev_b32 v{vT}, 1, v{vLane}")
        a.e(f"v_and_b32 v{vT+1}, 1, v{vLane}")
        a.e(f"s_lshl_b32 s{sT0}, s{sW}, 5")
        a.e(f"v_add_u32 v{vT+2}, s{sT0}, v{vT}")
        a.e(f"v_lshlrev_b32 v{vT+3}, 14, v{vT+2}")
        a.e(f"v_lshl_add_u32 v{vT+3}, v{vT+1}, 4, v{vT+3}")
        a.e(f"v_lshlrev_b32 v{vT+2}, 2, v{vT+2}")
        a.e(f"v_lshlrev_b32 v{vL16}, 4, v{vLane}")
        a.e(f"s_lshl_b32 s{sT0}, s{sW}, 13")
        a.e(f"v_add_u32 v{vK0}, s{sT0}, v{vL16}")
        a.e(f"v_add_u32 v{vK1}, 0x1000, v{vK0}")
        a.e(f"s_lshl_b32 s{sT0}, s{sH}, 8")
        a.e(f"s_lshl_b32 s{sT1}, s{sT1}, 5")
        a.e(f"s_add_u32 s{sT0}, s{sT0}, s{sT1}")
        a.e(f"s_lshl_b32 s{sT1}, s{sB}, 5")
        a.e(f"s_add_u32 s{sT1}, s{sT1}, s{sH}")
        a.e(f"s_lshl_b32 s{sT1}, s{sT1}, 1")
        a.e(f"s_add_u32 s{sT1}, s{sT1}, s{sS}")
        a.e(f"s_lshl_b32 s{sT1}, s{sT1}, 20")
        a.e(f"s_mov_b32 s{sT2}, 0x2000")
        a.e("s_waitcnt lgkmcnt(0)")
        srd(a, sWQ, 10, sT0, "0x400000")
        a.e(f"s_sub_u32 s{sWQ+2}, s{sWQ+2}, s{sT0}")
        srd(a, sX, 4, None, "0x1000")
        a.vmem(f"buffer_load_dwordx4 {vr(vWX,4)}, v{vT+3}, {sr(sWQ,4)}, 0 offen{wpol}", "wq0")
        a.vmem(f"buffer_load_dwordx4 {vr(vWX+4,4)}, v{vT+3}, {sr(sWQ,4)}, s{sT2} offen{wpol}", "wq1")
        for b_ in range(4):
            a.vmem(f"buffer_load_dword v{vXQ+b_}, v{vT+2}, {sr(sX,4)}, 0 offen offset:{b_*1024}", f"x{b_}")
        srd(a, sK, 6, sT1, "0x100000")
        srd(a, sV, 8, sT1, "0x100000")
        def slot_load(n):
            j = n & 7
            base, s_ = (vKb, sK) if n < 8 else (vVb, sV)
            return f"buffer_load_dwordx4 {vr(base+4*j,4)}, v{vK0+(j>>2)}, {sr(s_,4)}, 0 offen offset:{(j&3)*1024}{pol}"
        NT = 16
        issued = 0
        def issue_upto(g):
            nonlocal issued
            while issued <= g and issued < NT * 16:
                t, n = divmod(issued, 16)
                if n == 0 and t > 0:
                    a.e(f"v_add_u32 v{vK0}, 0x10000, v{vK0}")
                    a.e(f"v_add_u32 v{vK1}, 0x10000, v{vK1}")
                a.vmem(slot_load(n), f"t{t}n{n}")
                issued += 1
        issue_upto(opt.pa - 1)
        a.c("remaining descriptors and lane constants")
        a.e(f"s_lshl_b32 s{sT0}, s{sH}, 17")
        a.e(f"s_lshl_b32 s{sT2}, s{sW}, 7")
        a.e(f"s_add_u32 s{sT0}, s{sT0}, s{sT2}")
        srd(a, sWO, 12, sT0, "0x20000")
        a.e(f"s_sub_u32 s{sWO+2}, s{sWO+2}, s{sT2}")
        srd(a, sWS, 22, None, f"0x{WS_SIZE:x}")
        a.e(f"s_mov_b32 s{sC}, 0x{f32bits(SCALE_LOG2E):08x}")
        a.e(f"s_mov_b32 s{sPAR}, 0xaaaaaaaa")
        a.e(f"s_mov_b32 s{sPAR+1}, 0xaaaaaaaa")
        a.e(f"v_lshrrev_b32 v{vT}, 4, v{vLane}")
        a.e(f"v_and_b32 v{vT+1}, 15, v{vLane}")
        a.e(f"v_lshlrev_b32 v{vA0}, 3, v{vT}")
        a.e(f"v_lshl_add_u32 v{vA0}, v{vT+1}, 5, v{vA0}")
        a.e(f"v_lshrrev_b32 v{vA1}, 3, v{vLane}")
        a.e(f"v_lshlrev_b32 v{vA1}, 11, v{vA1}")
        a.e(f"v_and_b32 v{vT+2}, 7, v{vLane}")
        a.e(f"v_lshl_add_u32 v{vA1}, v{vT+2}, 4, v{vA1}")
        a.e(f"v_lshlrev_b32 v{vT+2}, 6, v{vT}")
        a.e(f"v_and_b32 v{vT+3}, 1, v{vLane}")
        a.e(f"v_lshl_add_u32 v{vT+2}, v{vT+3}, 5, v{vT+2}")
        a.e(f"s_lshl_b32 s{sT0}, s{sW}, 8")
        a.e(f"v_add_u32 v{vT+2}, s{sT0}, v{vT+2}")
        stamp(1)
        a.c("q piece: 16 columns x 4 batches over this wave's 64 rows of wq")
        a.wait_vm("x3")
        for d in range(4):
            a.e(f"v_perm_b32 v{vT}, v{vWX+4+d}, v{vWX+d}, s{sPLO}")
            a.e(f"v_perm_b32 v{vT+1}, v{vWX+4+d}, v{vWX+d}, s{sPHI}")
            for b_ in range(4):
                a.e(f"v_dot2_f32_bf16 v{vAcc+8*b_+2*d}, v{vT}, v{vXQ+b_}, 0")
                a.e(f"v_dot2_f32_bf16 v{vAcc+8*b_+2*d+1}, v{vT+1}, v{vXQ+b_}, 0")
        a.e("s_nop 2")
        for k in range(16):
            a.e(f"v_permlane32_swap_b32 v{vAcc+k}, v{vAcc+16+k}")
        for k in range(16):
            a.e(f"v_add_f32 v{vAcc+k}, v{vAcc+k}, v{vAcc+16+k}")
        for k in range(8):
            a.e(f"v_permlane16_swap_b32 v{vAcc+k}, v{vAcc+8+k}")
        for k in range(8):
            a.e(f"v_add_f32 v{vAcc+k}, v{vAcc+k}, v{vAcc+8+k}")
        for m in ("row_ror:8", "row_ror:4", "quad_perm:[2,3,0,1]"):
            for k in range(8):
                a.e(f"v_add_f32_dpp v{vAcc+k}, v{vAcc+k}, v{vAcc+k} {m} {FULL}")
        a.e(f"ds_write_b128 v{vT+2}, {vr(vAcc,4)} offset:{LDS_QP}")
        a.e(f"ds_write_b128 v{vT+2}, {vr(vAcc+4,4)} offset:{LDS_QP+16}")
        stamp(2)
        a.e("s_waitcnt lgkmcnt(0)")
        a.e("s_barrier")
        issue_upto(P0 - 1)
        for k in range(8):
            a.e(f"v_mov_b32 v{vO+k}, 0")
        a.e(f"v_mov_b32 v{vM}, 0xff7fffff")
        a.e(f"v_mov_b32 v{vL}, 0")
        a.e(f"v_and_b32 v{vT}, 15, v{vLane}")
        a.e(f"v_lshlrev_b32 v{vT}, 4, v{vT}")
        a.e("s_barrier")
        a.e(f"ds_read_b128 {vr(vQ,4)}, v{vT} offset:{LDS_QF}")
        a.e("s_waitcnt lgkmcnt(0)")
        stamp(3)

    else:
        if opt.rot:
            a.e(f"s_add_u32 s{sT3}, s{sW}, s{sT1}")
            a.e(f"s_and_b32 s{sT3}, s{sT3}, 7")
        else:
            a.e(f"s_mov_b32 s{sT3}, s{sW}")
        a.e(f"v_lshrrev_b32 v{vT}, 4, v{vLane}")
        a.e(f"v_and_b32 v{vT+1}, 15, v{vLane}")
        a.e(f"v_lshlrev_b32 v{vT+2}, 5, v{vT}")
        a.e(f"v_lshlrev_b32 v{vT+3}, 17, v{vT}")
        a.e(f"v_lshl_add_u32 v{vT+3}, v{vT+1}, 4, v{vT+3}")
        a.e(f"v_lshlrev_b32 v{vA0}, 3, v{vT}")
        a.e(f"v_lshl_add_u32 v{vA0}, v{vT+1}, 5, v{vA0}")
        a.e(f"v_lshlrev_b32 v{vL16}, 4, v{vLane}")
        a.e(f"s_lshl_b32 s{sT0}, s{sW}, 13")
        a.e(f"v_add_u32 v{vK0}, s{sT0}, v{vL16}")
        a.e(f"v_add_u32 v{vK1}, 0x1000, v{vK0}")
        a.e(f"s_lshl_b32 s{sT1}, s{sB}, 10")
        a.e(f"s_lshl_b32 s{sT2}, s{sT3}, 7")
        a.e(f"s_add_u32 s{sT1}, s{sT1}, s{sT2}")
        a.e(f"s_lshl_b32 s{sT2}, s{sT3}, 19")
        a.e(f"s_lshl_b32 s{sT0}, s{sH}, 8")
        a.e("s_waitcnt lgkmcnt(0)")
        srd(a, sX, 4, None, "0x1000")
        srd(a, sWQ, 10, sT0, "0x400000")
        a.e(f"s_sub_u32 s{sWQ+2}, s{sWQ+2}, s{sT0}")
        vXQ = vS
        if opt.q:
            a.vmem(f"buffer_load_dwordx4 {vr(vXQ,4)}, v{vT+2}, {sr(sX,4)}, s{sT1} offen", "xq")
            a.vmem(f"buffer_load_dwordx4 {vr(vXQ+4,4)}, v{vT+2}, {sr(sX,4)}, s{sT1} offen offset:16", "xq")
        a.e(f"s_lshl_b32 s{sT0}, s{sB}, 5")
        a.e(f"s_add_u32 s{sT0}, s{sT0}, s{sH}")
        a.e(f"s_lshl_b32 s{sT0}, s{sT0}, 1")
        a.e(f"s_add_u32 s{sT0}, s{sT0}, s{sS}")
        a.e(f"s_lshl_b32 s{sT0}, s{sT0}, 20")
        srd(a, sK, 6, sT0, "0x100000")
        srd(a, sV, 8, sT0, "0x100000")
        def slot_load(n):
            j = n & 7
            base, s_ = (vKb, sK) if n < 8 else (vVb, sV)
            return f"buffer_load_dwordx4 {vr(base+4*j,4)}, v{vK0+(j>>2)}, {sr(s_,4)}, 0 offen offset:{(j&3)*1024}{pol}"
        NT = 16
        issued = 0
        def issue_upto(g):
            nonlocal issued
            while issued <= g and issued < NT * 16:
                t, n = divmod(issued, 16)
                if n == 0 and t > 0:
                    a.e(f"v_add_u32 v{vK0}, 0x10000, v{vK0}")
                    a.e(f"v_add_u32 v{vK1}, 0x10000, v{vK1}")
                a.vmem(slot_load(n), f"t{t}n{n}")
                issued += 1
        PA, PB = opt.pa, opt.pb
        for j in range(16 if opt.q else 0):
            a.vmem(f"buffer_load_dwordx4 {vr(vWQ+4*j,4)}, v{vT+3}, {sr(sWQ,4)}, s{sT2} offen{wpol}", f"wq{j}")
            if j < 15:
                a.e(f"s_add_u32 s{sT2}, s{sT2}, 0x2000")
            if (j + 1) % opt.ilv == 0 and issued < PA:
                issue_upto(issued)
        issue_upto(min(P0, PA + PB) - 1)
        a.e(f"s_lshl_b32 s{sT0}, s{sH}, 17")
        a.e(f"s_lshl_b32 s{sT2}, s{sW}, 7")
        a.e(f"s_add_u32 s{sT0}, s{sT0}, s{sT2}")
        srd(a, sWO, 12, sT0, "0x20000")
        a.e(f"s_sub_u32 s{sWO+2}, s{sWO+2}, s{sT2}")
        a.e(f"v_lshrrev_b32 v{vA1}, 3, v{vLane}")
        a.e(f"v_lshlrev_b32 v{vA1}, 11, v{vA1}")
        a.e(f"v_and_b32 v{vT}, 7, v{vLane}")
        a.e(f"v_lshl_add_u32 v{vA1}, v{vT}, 4, v{vA1}")
        srd(a, sWS, 22, None, f"0x{WS_SIZE:x}")
        a.e(f"s_mov_b32 s{sC}, 0x{f32bits(SCALE_LOG2E):08x}")
        a.e(f"s_mov_b32 s{sPAR}, 0xaaaaaaaa")
        a.e(f"s_mov_b32 s{sPAR+1}, 0xaaaaaaaa")
        for k in range(8):
            a.e(f"v_mov_b32 v{vO+k}, 0")
        stamp(1)
        a.c("q partial sums over this wave's 64 rows of wq")
        for p in range(8 if opt.q else 0):
            a.wait_vm(f"wq{2*p+1}")
            for d in range(4):
                r0 = vWQ + 8*p + d
                r1 = vWQ + 8*p + 4 + d
                a.e(f"v_perm_b32 v{vT}, v{r1}, v{r0}, s{sPLO}")
                a.e(f"v_perm_b32 v{vT+1}, v{r1}, v{r0}, s{sPHI}")
                a.e(f"v_dot2c_f32_bf16 v{vO+2*d}, v{vT}, v{vXQ+p}")
                a.e(f"v_dot2c_f32_bf16 v{vO+2*d+1}, v{vT+1}, v{vXQ+p}")
            if issued < P0: issue_upto(issued)
        issue_upto(P0 - 1)
        a.e(f"s_lshl_b32 s{sT0}, s{sW}, 9")
        a.e(f"v_add_u32 v{vT+2}, s{sT0}, v{vA0}")
        a.e("s_nop 0")
        reduce_scatter8(a, vO)
        a.e(f"ds_write_b64 v{vT+2}, {vr(vO,2)} offset:{LDS_QP}")
        stamp(2)
        a.e("s_waitcnt lgkmcnt(0)")
        a.e("s_barrier")
        a.c("q: lane (g,i) sums columns 8i+2g, 8i+2g+1 over the 8 waves, then the rows exchange their pairs")
        for x in range(8):
            a.e(f"ds_read_b64 {vr(vS+ (2*x if x < 4 else 0), 2) if x < 4 else vr(vO+2*(x-4), 2)}, v{vA0} offset:{LDS_QP + x*512}")
        a.e("s_waitcnt lgkmcnt(0)")
        for k in range(2):
            a.e(f"v_add_f32 v{vS+k}, v{vS+k}, v{vS+2+k}")
            a.e(f"v_add_f32 v{vS+4+k}, v{vS+4+k}, v{vS+6+k}")
            a.e(f"v_add_f32 v{vO+k}, v{vO+k}, v{vO+2+k}")
            a.e(f"v_add_f32 v{vO+4+k}, v{vO+4+k}, v{vO+6+k}")
        for k in range(2):
            a.e(f"v_add_f32 v{vS+k}, v{vS+k}, v{vS+4+k}")
            a.e(f"v_add_f32 v{vO+k}, v{vO+k}, v{vO+4+k}")
        for k in range(2):
            a.e(f"v_add_f32 v{vS+k}, v{vS+k}, v{vO+k}")
        a.e(f"v_cvt_pk_bf16_f32 v{vQ}, v{vS}, v{vS+1}")
        a.e(f"v_mov_b32 v{vQ+1}, v{vQ}")
        a.e("s_nop 1")
        a.e(f"v_permlane16_swap_b32 v{vQ}, v{vQ+1}")
        a.e("s_nop 1")
        a.e(f"v_mov_b32 v{vQ+2}, v{vQ}")
        a.e(f"v_mov_b32 v{vQ+3}, v{vQ+1}")
        a.e("s_nop 1")
        a.e(f"v_permlane32_swap_b32 v{vQ}, v{vQ+2}")
        a.e(f"v_permlane32_swap_b32 v{vQ+1}, v{vQ+3}")
        for k in range(8):
            a.e(f"v_mov_b32 v{vO+k}, 0")
        a.e(f"v_mov_b32 v{vM}, 0xff7fffff")
        a.e(f"v_mov_b32 v{vL}, 0")
        stamp(3)


    def pos(j): return 4*(j >> 1) + (j & 1)
    def wo_load(j):
        a.e(f"s_mov_b32 s{sT2}, {(16*(j>>1) + (j&1))*1024}")
        a.vmem(f"buffer_load_dwordx4 {vr(vWQ+4*j,4)}, v{vA1}, {sr(sWO,4)}, s{sT2} offen{wpol}", f"wo{j}")
    def wo_perm(p):
        for d in range(4):
            r0 = vWQ + 8*p + d
            r1 = vWQ + 8*p + 4 + d
            a.e(f"v_perm_b32 v{vT}, v{r1}, v{r0}, s{sPLO}")
            a.e(f"v_perm_b32 v{r1}, v{r1}, v{r0}, s{sPHI}")
            a.e(f"v_mov_b32 v{r0}, v{vT}")
    for t in range(NT):
        a.c(f"tile {t}")
        if t == 1: stamp(4)
        if t == opt.ztile:
            a.c("tell the auxiliary wave that the FFN rows of all workgroups are long due (wave 0 only)")
            a.e(f"s_cmp_lg_u32 s{sW}, 0")
            a.e(f"s_cbranch_scc1 L_noflag")
            a.e(f"v_mov_b32 v{vT}, {LDS_FLAG}")
            a.e(f"v_mov_b32 v{vT+1}, 1")
            a.e(f"ds_write_b32 v{vT}, v{vT+1}")
            a.label("L_noflag")
        for j in range(8):
            a.wait_vm(f"t{t}n{j}")
            issue_upto(16*t + j + la_at(16*t + j))
            if j == 0 and t < 8 and opt.wo:
                wo_load(2*t); wo_load(2*t+1)
            if opt.nocomp & 1: continue
            a.e(f"v_dot2_f32_bf16 v{vS+j}, v{vKb+4*j}, v{vQ}, 0")
            for d in range(1, 4):
                a.e(f"v_dot2_f32_bf16 v{vS+j}, v{vKb+4*j+d}, v{vQ+d}, v{vS+j}")
        mark = len(a.lines)
        a.e("s_nop 2")
        for j in range(4):
            a.e(f"v_add_f32_dpp v{vS+j}, v{vS+j}, v{vS+j} row_ror:8 row_mask:0xf bank_mask:0x3")
        for j in range(4):
            a.e(f"v_add_f32_dpp v{vS+j}, v{vS+j+4}, v{vS+j+4} row_ror:8 row_mask:0xf bank_mask:0xc")
        for j in range(2):
            a.e(f"v_add_f32_dpp v{vS+j}, v{vS+j}, v{vS+j} row_half_mirror row_mask:0xf bank_mask:0x5")
        for j in range(2):
            a.e(f"v_add_f32_dpp v{vS+j}, v{vS+j+2}, v{vS+j+2} row_half_mirror row_mask:0xf bank_mask:0xa")
        a.e("s_nop 0")
        for j in range(2):
            a.e(f"v_add_f32_dpp v{vS+j}, v{vS+j}, v{vS+j} quad_perm:[1,0,3,2] {FULL}")
        a.e("s_nop 0")
        a.e(f"v_cndmask_b32 v{vT}, v{vS}, v{vS+1}, {sr(sPAR,2)}")
        a.e("s_nop 1")
        a.e(f"v_add_f32_dpp v{vT}, v{vT}, v{vT} quad_perm:[2,3,0,1] {FULL}")
        a.e(f"v_mul_f32 v{vT}, s{sC}, v{vT}")
        a.e("s_nop 1")
        a.e(f"v_max_f32_dpp v{vT+1}, v{vT}, v{vT} quad_perm:[1,0,3,2] {FULL}")
        a.e("s_nop 1")
        a.e(f"v_max_f32_dpp v{vT+1}, v{vT+1}, v{vT+1} row_ror:4 {FULL}")
        a.e("s_nop 1")
        a.e(f"v_max_f32_dpp v{vT+1}, v{vT+1}, v{vT+1} row_ror:8 {FULL}")
        a.e(f"v_max_f32 v{vT+1}, v{vT+1}, v{vM}")
        a.e(f"v_sub_f32 v{vAl}, v{vM}, v{vT+1}")
        a.e(f"v_sub_f32 v{vT}, v{vT}, v{vT+1}")
        a.e(f"v_exp_f32 v{vAl}, v{vAl}")
        a.e(f"v_exp_f32 v{vT}, v{vT}")
        a.e(f"v_mov_b32 v{vM}, v{vT+1}")
        a.e(f"v_cvt_pk_bf16_f32 v{vPlo}, v{vT}, 0")
        a.e(f"v_cvt_pk_bf16_f32 v{vPhi}, 0, v{vT}")
        a.e(f"v_fma_f32 v{vL}, v{vL}, v{vAl}, v{vT}")
        for k in range(8):
            a.e(f"v_mul_f32 v{vO+k}, v{vAl}, v{vO+k}")
        if opt.nocomp & 2: del a.lines[mark:]
        for j in range(8):
            a.wait_vm(f"t{t}n{8+j}")
            issue_upto(16*t + 8 + j + la_at(16*t + 8 + j))
            for d in range(4 if not (opt.nocomp & 4) else 0):
                a.e(f"v_dot2c_f32_bf16_dpp v{vO+2*d}, v{vPlo}, v{vVb+4*j+d} row_newbcast:{pos(j)} {FULL}")
                a.e(f"v_dot2c_f32_bf16_dpp v{vO+2*d+1}, v{vPhi}, v{vVb+4*j+d} row_newbcast:{pos(j)} {FULL}")
        if opt.wo and 1 <= t <= 8:
            wo_perm(t - 1)
    stamp(5)
    a.c("in-wave combine of the 4 lane rows")
    a.e(f"v_mov_b32 v{vT+2}, v{vM}")
    allred_rows(a, vT+2, vT, vT+1, "v_max_f32")
    a.e(f"v_sub_f32 v{vAl}, v{vM}, v{vT+2}")
    a.e(f"v_exp_f32 v{vAl}, v{vAl}")
    a.e(f"v_mov_b32 v{vM}, v{vT+2}")
    a.e(f"v_mul_f32 v{vL}, v{vAl}, v{vL}")
    for k in range(8):
        a.e(f"v_mul_f32 v{vO+k}, v{vAl}, v{vO+k}")
    a.e(f"v_add_f32_dpp v{vL}, v{vL}, v{vL} quad_perm:[1,0,3,2] {FULL}")
    a.e(f"s_lshl_b32 s{sT0}, s{sW}, 9")
    a.e(f"v_add_u32 v{vT+2}, s{sT0}, v{vA0}")
    a.e(f"v_add_f32_dpp v{vL}, v{vL}, v{vL} quad_perm:[2,3,0,1] {FULL}")
    reduce_scatter8(a, vO)
    a.e(f"ds_write_b64 v{vT+2}, {vr(vO,2)} offset:{LDS_OP}")
    a.e(f"v_add_f32_dpp v{vL}, v{vL}, v{vL} row_ror:4 {FULL}")
    a.e(f"s_lshl_b32 s{sT0}, s{sW}, 3")
    a.e(f"v_mov_b32 v{vT+2}, s{sT0}")
    a.e(f"v_add_f32_dpp v{vL}, v{vL}, v{vL} row_ror:8 {FULL}")
    allred_rows(a, vL, vT, vT+1, "v_add_f32")
    a.e(f"v_mul_f32 v{vL}, 0.5, v{vL}")
    a.e(f"ds_write_b64 v{vT+2}, {vr(vM,2)} offset:{LDS_ML}")
    for k in range(8):
        a.e(f"v_mov_b32 v{vS+k}, 0")
    a.e(f"v_lshrrev_b32 v{vT}, 3, v{vLane}")
    a.e(f"v_and_b32 v{vT+1}, 7, v{vLane}")
    a.e(f"v_lshlrev_b32 v{vT}, 3, v{vT}")
    a.e(f"v_lshl_add_u32 v{vT}, v{vT+1}, 6, v{vT}")
    a.e(f"v_mov_b32 v{vT+1}, 0")
    a.e("s_waitcnt lgkmcnt(0)")
    a.e("s_barrier")
    stamp(6)
    a.c("merge the 8 waves: this lane owns the dimension pair (16*c8 + 2r, +1)")
    vML, vOP = vKb, vVb
    for x in range(4):
        a.e(f"ds_read_b128 {vr(vML+4*x,4)}, v{vT+1} offset:{LDS_ML + 16*x}")
    for x in range(8):
        a.e(f"ds_read_b64 {vr(vOP+2*x,2)}, v{vT} offset:{LDS_OP + x*512}")
    a.e("s_waitcnt lgkmcnt(8)")
    a.e(f"v_max3_f32 v{vM}, v{vML}, v{vML+2}, v{vML+4}")
    a.e(f"v_max3_f32 v{vT+2}, v{vML+6}, v{vML+8}, v{vML+10}")
    a.e(f"v_max3_f32 v{vM}, v{vM}, v{vML+12}, v{vML+14}")
    a.e(f"v_max_f32 v{vM}, v{vM}, v{vT+2}")
    for x in range(8):
        a.e(f"v_sub_f32 v{vML+2*x}, v{vML+2*x}, v{vM}")
    for x in range(8):
        a.e(f"v_exp_f32 v{vML+2*x}, v{vML+2*x}")
    a.e(f"v_mul_f32 v{vL}, v{vML}, v{vML+1}")
    for x in range(1, 8):
        a.e(f"v_fma_f32 v{vL}, v{vML+2*x}, v{vML+2*x+1}, v{vL}")
    a.e("s_waitcnt lgkmcnt(0)")
    a.e(f"v_mul_f32 v{vO}, v{vML}, v{vOP}")
    a.e(f"v_mul_f32 v{vO+1}, v{vML}, v{vOP+1}")
    for x in range(1, 8):
        a.e(f"v_fma_f32 v{vO}, v{vML+2*x}, v{vOP+2*x}, v{vO}")
        a.e(f"v_fma_f32 v{vO+1}, v{vML+2*x}, v{vOP+2*x+1}, v{vO+1}")
    a.e(f"v_cvt_pk_bf16_f32 v{vPlo}, v{vO}, v{vO+1}")
    a.e(f"s_mul_i32 s{sT0}, s{sIDX}, {YROW}")
    a.e(f"s_add_u32 s{sT2}, s{sT0}, 2048")
    a.c("row group r = 2g + (i>>3) needs the pairs held by lanes (r, j') : broadcast inside half rows")
    for j in range(8):
        a.e(f"v_mov_b32_dpp v{vO+j}, v{vPlo} row_newbcast:{j} row_mask:0xf bank_mask:0x3")
    for j in range(8):
        a.e(f"v_mov_b32_dpp v{vO+j}, v{vPlo} row_newbcast:{8+j} row_mask:0xf bank_mask:0xc")
    a.c("projection: 64 columns of this wave, all 128 rows of the head (wo pre-permuted into row pairs)")
    for p in range(8):
        for d in range(4):
            r0 = vWQ + 8*p + d
            r1 = vWQ + 8*p + 4 + d
            a.e(f"v_dot2c_f32_bf16 v{vS+2*d}, v{vO+p}, v{r0}")
            a.e(f"v_dot2c_f32_bf16 v{vS+2*d+1}, v{vO+p}, v{r1}")
    a.e(f"v_and_b32 v{vT}, 7, v{vLane}")
    a.e(f"v_lshlrev_b32 v{vT}, 5, v{vT}")
    a.e(f"v_lshrrev_b32 v{vT+1}, 5, v{vLane}")
    a.e(f"v_lshl_add_u32 v{vT}, v{vT+1}, 4, v{vT}")
    a.e(f"s_lshl_b32 s{sT1}, s{sW}, 8")
    a.e(f"s_add_u32 s{sT0}, s{sT0}, s{sT1}")
    for k in range(4):
        a.e(f"v_permlane32_swap_b32 v{vS+k}, v{vS+4+k}")
    a.e("s_nop 1")
    for k in range(4):
        a.e(f"v_add_f32 v{vS+k}, v{vS+k}, v{vS+4+k}")
    a.e("s_nop 0")
    for k in range(4):
        a.e(f"v_add_f32_dpp v{vS+k}, v{vS+k}, v{vS+k} row_ror:8 {FULL}")
    for k in range(4):
        a.e(f"v_mov_b32 v{vS+4+k}, v{vS+k}")
    a.e("s_nop 1")
    for k in range(4):
        a.e(f"v_permlane16_swap_b32 v{vS+k}, v{vS+4+k}")
    a.e("s_nop 1")
    for k in range(4):
        a.e(f"v_add_f32 v{vS+k}, v{vS+k}, v{vS+4+k}")
    a.e(f"v_and_b32 v{vT+1}, 24, v{vLane}")
    a.e(f"v_cmp_eq_u32 vcc, 0, v{vT+1}")
    a.e(f"s_and_saveexec_b64 {sr(sEX,2)}, vcc")
    a.e(f"buffer_store_dwordx4 {vr(vS,4)}, v{vT}, {sr(sWS,4)}, s{sT0} offen sc1")
    a.e(f"s_cmp_lg_u32 s{sW}, 0")
    a.e("s_cbranch_scc1 L_no_ml")
    a.e("s_mov_b64 exec, 1")
    a.e(f"v_mov_b32 v{vT+1}, 0")
    a.e(f"buffer_store_dwordx2 {vr(vM,2)}, v{vT+1}, {sr(sWS,4)}, s{sT2} offen sc1")
    a.label("L_no_ml")
    a.e(f"s_mov_b64 exec, {sr(sEX,2)}")
    stamp(7)
    a.label("L_stream_done")
    if opt.stamps:
        stamp(8)
        a.e("s_waitcnt vmcnt(0)")
        stamp(9)
        dump_stamps(vT, vS, vLane, 10)
    a.e("s_endpgm")

    a.vmq = []
    a.raw(".p2align 6")
    a.label("L_aux")
    uX = 2
    uAcc = 18
    uT = 26
    uW = 40
    uZ = 104
    uML = 112
    uG, uG1, uB2, uOff, uH2, uNeg, uEp = 116, 117, 118, 119, 120, 121, 122
    if opt.pf:
        a.c("warm L2 with this kernel's code (instruction fetch misses then stop at L2)")
        a.e("s_getpc_b64 s[70:71]")
        a.label("L_pc")
        a.e(f"s_sub_u32 s70, s70, L_pc-{K1}")
        a.e("s_subb_u32 s71, s71, 0")
        a.e(f"v_lshlrev_b32 v26, 7, v{vLane}")
        a.e(f"s_mov_b32 s{sT0}, L_code_end-{K1}-4")
        for x in range(opt.pf):
            a.e(f"v_min_u32 v27, s{sT0}, v26")
            a.e(f"v_and_b32 v27, 0xfffffffc, v27")
            a.e(f"global_load_dword v{128+x}, v27, s[70:71]")
            a.e(f"v_add_u32 v26, 0x2000, v26")
    a.e("s_waitcnt lgkmcnt(0)")
    a.e("s_load_dwordx4 s[8:11], s[0:1], 72")
    a.e("s_load_dwordx4 s[12:15], s[0:1], 88")
    a.e("s_waitcnt lgkmcnt(0)")
    srd(a, sX, 4, None, "0x1000")
    srd(a, sWS, 22, None, f"0x{WS_SIZE:x}")
    srd(a, sDBG, 14, None, "256")
    a.c("epoch of this launch = (word left in the workspace) + 1: tells this launch's hand-offs from older ones")
    def epoch_addr():
        if opt.coop:
            a.e(f"s_mov_b32 s{sT0}, {WS_EPOCH}")
        else:
            a.e(f"s_lshl_b32 s{sT0}, s{sB}, 7")
            a.e(f"s_add_u32 s{sT0}, s{sT0}, {WS_EPOCH}")
    a.e(f"v_mov_b32 v{uT+4}, 0")
    epoch_addr()
    a.e(f"buffer_load_dword v{uEp}, v{uT+4}, {sr(sWS,4)}, s{sT0} offen sc1")
    a.e(f"v_mov_b32 v26, {LDS_FLAG}")
    a.e(f"v_mov_b32 v27, 0")
    a.e(f"ds_write_b32 v26, v27")
    if opt.coop:
        a.e(f"v_lshlrev_b32 v{uT+2}, 2, v{vLane}")
        a.e(f"s_lshl_b32 s{sT0}, s{sH}, 11")
        a.e(f"s_add_u32 s{sT0}, s{sT0}, {WS_QX}")
        a.e(f"s_lshl_b32 s{sT1}, s{sB}, 1")
        a.e(f"s_add_u32 s{sT1}, s{sT1}, s{sS}")
        a.e(f"s_lshl_b32 s{sT1}, s{sT1}, 8")
        a.e(f"s_add_u32 s{sT1}, s{sT1}, s{sT0}")
        a.e(f"v_lshrrev_b32 v{uT+5}, 3, v{vLane}")
        a.e(f"v_lshlrev_b32 v{uT+5}, 8, v{uT+5}")
        a.e(f"v_and_b32 v{uT+6}, 7, v{vLane}")
        a.e(f"v_lshl_add_u32 v{uT+5}, v{uT+6}, 3, v{uT+5}")
        a.e(f"s_lshl_b32 s{sT2}, s{sB}, 6")
        a.e(f"s_add_u32 s{sT2}, s{sT2}, s{sT0}")
        a.e("s_waitcnt vmcnt(0) lgkmcnt(0)")
        a.e(f"v_add_u32 v{uEp}, 1, v{uEp}")
        if opt.prio: a.e(f"s_setprio {opt.prio}")
        a.e("s_barrier")
        qstamp(1)
        a.c("sum the 8 partial q pieces (lane = batch*16 + column), publish them as {bf16 pair, epoch} granules")
        for x in range(8):
            a.e(f"ds_read_b32 v{uW+x}, v{uT+2} offset:{LDS_QP + x*256}")
        a.e("s_waitcnt lgkmcnt(0)")
        for x in (0, 2, 4, 6):
            a.e(f"v_add_f32 v{uW+x}, v{uW+x}, v{uW+x+1}")
        a.e(f"v_add_f32 v{uW}, v{uW}, v{uW+2}")
        a.e(f"v_add_f32 v{uW+4}, v{uW+4}, v{uW+6}")
        a.e(f"v_add_f32 v{uW}, v{uW}, v{uW+4}")
        a.e(f"v_lshlrev_b32 v{uT+3}, 2, v{vLane}")
        a.e("s_nop 0")
        a.e(f"v_mov_b32_dpp v{uW+1}, v{uW} quad_perm:[1,0,3,2] {FULL}")
        a.e(f"v_mov_b32 v{uW+3}, v{uEp}")
        a.e(f"v_cvt_pk_bf16_f32 v{uW+2}, v{uW}, v{uW+1}")
        a.e(f"s_mov_b32 s{sEX}, 0x55555555")
        a.e(f"s_mov_b32 s{sEX+1}, 0x55555555")
        a.e(f"s_mov_b64 exec, {sr(sEX,2)}")
        a.e(f"buffer_store_dwordx2 {vr(uW+2,2)}, v{uT+3}, {sr(sWS,4)}, s{sT1} offen sc1")
        a.e("s_mov_b64 exec, -1")
        qstamp(2)
        a.c("collect the 64 column pairs of this batch from the 8 workgroups of the head")
        a.e(f"s_mov_b32 s{sCNT}, {opt.spin}")
        a.label("L_q_poll")
        a.e(f"buffer_load_dwordx2 {vr(uW+4,2)}, v{uT+5}, {sr(sWS,4)}, s{sT2} offen sc1")
        a.e("s_waitcnt vmcnt(0)")
        if opt.qdbg:
            a.e(f"s_cmp_lg_u32 s{sCNT}, {opt.spin}")
            a.e("s_cbranch_scc1 L_q_nf")
            qstamp(3)
            a.label("L_q_nf")
        a.e(f"v_cmp_ne_u32 vcc, v{uW+5}, v{uEp}")
        a.e("s_nop 4")
        a.e("s_cbranch_vccz L_q_ok")
        a.e(f"s_sub_u32 s{sCNT}, s{sCNT}, 1")
        a.e(f"s_cmp_lg_u32 s{sCNT}, 0")
        a.e("s_cbranch_scc1 L_q_poll")
        a.label("L_q_ok")
        qstamp(4)
        a.e(f"ds_write_b32 v{uT+2}, v{uW+4} offset:{LDS_QF}")
        a.e("s_waitcnt lgkmcnt(0)")
        a.e("s_barrier")
    else:
        a.e("s_waitcnt lgkmcnt(0)")
        a.e("s_barrier")
        a.e("s_waitcnt vmcnt(0)")
        a.e(f"v_add_u32 v{uEp}, 1, v{uEp}")
    qstamp(5)
    if opt.prio: a.e("s_setprio 0")
    in_aux[0] = True
    stamp(1)
    if not opt.aux:
        a.e("s_barrier")
        if opt.stamps:
            srd(a, sWS, 22, None, f"0x{WS_SIZE:x}")
            for i in range(2, 10): stamp(i)
            dump_stamps(26, 28, vLane, 10)
        a.e("s_endpgm")
    a.c("clear this workgroup's y row and m/l with the 'not written' pattern")
    a.e(f"v_mov_b32 v{uT}, -1")
    a.e(f"v_mov_b32 v{uT+1}, -1")
    a.e(f"v_mov_b32 v{uT+2}, -1")
    a.e(f"v_mov_b32 v{uT+3}, -1")
    a.e(f"v_lshlrev_b32 v{uOff}, 4, v{vLane}")
    a.e(f"s_mul_i32 s{sT0}, s{sIDX}, {YROW}")
    if opt.axoff & 4: a.e(f"s_mov_b32 s{sWS+2}, 0")
    a.e(f"buffer_store_dwordx4 {vr(uT,4)}, v{uOff}, {sr(sWS,4)}, s{sT0} offen sc1")
    a.e(f"buffer_store_dwordx4 {vr(uT,4)}, v{uOff}, {sr(sWS,4)}, s{sT0} offen offset:1024 sc1")
    a.e(f"v_cmp_gt_u32 vcc, 8, v{vLane}")
    a.e(f"s_and_saveexec_b64 {sr(sEX,2)}, vcc")
    a.e(f"buffer_store_dwordx4 {vr(uT,4)}, v{uOff}, {sr(sWS,4)}, s{sT0} offen offset:2048 sc1")
    a.e(f"s_mov_b64 exec, {sr(sEX,2)}")
    a.c("FFN stage 1: 32 hidden units (8 per lane group c = lane&3), rows 32rr..32rr+31 with rr = lane>>2")
    a.e(f"s_min_u32 s{sT3}, s{sU}, 55")
    a.e(f"s_lshl_b32 s{sT0}, s{sT3}, 6")
    srd(a, sW1, 16, sT0, "0x1c0000")
    a.e(f"s_sub_u32 s{sW1+2}, s{sW1+2}, s{sT0}")
    a.e(f"s_lshl_b32 s{sT0}, s{sT3}, 15")
    srd(a, sW2, 20, sT0, "0x8000")
    a.e(f"s_cmp_ge_u32 s{sU}, 56")
    a.e(f"s_cselect_b32 s{sW1+2}, 0, s{sW1+2}")
    a.e(f"s_cselect_b32 s{sW2+2}, 0, s{sW2+2}")
    if opt.axoff & 1: a.e(f"s_mov_b32 s{sW1+2}, 0")
    if opt.axoff & 2: a.e(f"s_mov_b32 s{sW2+2}, 0")
    a.e(f"v_lshrrev_b32 v{uT}, 2, v{vLane}")
    a.e(f"v_lshlrev_b32 v{uT+1}, 6, v{uT}")
    a.e(f"s_lshl_b32 s{sT1}, s{sB}, 10")
    for x in range(4):
        a.vmem(f"buffer_load_dwordx4 {vr(uX+4*x,4)}, v{uT+1}, {sr(sX,4)}, s{sT1} offen offset:{16*x}", "xf")
    a.e(f"s_mov_b32 s{sT0}, {32*3584}")
    a.e(f"v_mul_lo_u32 v{uT+2}, s{sT0}, v{uT}")
    a.e(f"v_and_b32 v{uT+3}, 3, v{vLane}")
    a.e(f"v_lshl_add_u32 v{uT+2}, v{uT+3}, 4, v{uT+2}")
    for k in range(8):
        a.e(f"v_mov_b32 v{uAcc+k}, 0")
    WIN = opt.auxwin
    def ffn_stream(nload, mk_load, consume):
        issued_ = 0
        for p in range(nload // 2):
            while issued_ < min(nload, 2*p + 2 + WIN):
                a.vmem(mk_load(issued_), f"aux{issued_}")
                issued_ += 1
            a.wait_vm(f"aux{2*p+1}")
            consume(p)
    def w1_load(j):
        a.e(f"s_mov_b32 s{sT2}, {j*3584}")
        return f"buffer_load_dwordx4 {vr(uW+4*(j&15),4)}, v{uT+2}, {sr(sW1,4)}, s{sT2} offen{wpol}"
    def w1_use(p):
        j = (2*p) & 15
        for d in range(4):
            r0 = uW + 4*j + d; r1 = r0 + 4
            a.e(f"v_perm_b32 v{uT+4}, v{r1}, v{r0}, s{sPLO}")
            a.e(f"v_perm_b32 v{uT+5}, v{r1}, v{r0}, s{sPHI}")
            a.e(f"v_dot2c_f32_bf16 v{uAcc+2*d}, v{uT+4}, v{uX+p}")
            a.e(f"v_dot2c_f32_bf16 v{uAcc+2*d+1}, v{uT+5}, v{uX+p}")
    assert WIN + 2 <= 16
    ffn_stream(32, w1_load, w1_use)
    a.e("s_nop 2")
    reduce_scatter8(a, uAcc)
    a.e("s_nop 1")
    for k in range(2):
        a.e(f"v_add_f32_dpp v{uAcc+k}, v{uAcc+k}, v{uAcc+k} row_ror:8 {FULL}")
    a.e("s_nop 0")
    for k in range(2):
        a.e(f"v_add_f32_dpp v{uAcc+k}, v{uAcc+k}, v{uAcc+k} row_ror:4 {FULL}")
    a.c("lane (g, c): units 8c+2g, 8c+2g+1.  h = bf16(bf16(sum) + b1); h2 = bf16(relu(h)^2)")
    a.e(f"s_lshl_b32 s{sT0}, s{sT3}, 6")
    srd(a, sW1, 18, sT0, "64")
    a.e(f"v_lshrrev_b32 v{uT}, 4, v{vLane}")
    a.e(f"v_lshlrev_b32 v{uT}, 2, v{uT}")
    a.e(f"v_and_b32 v{uT+1}, 3, v{vLane}")
    a.e(f"v_lshl_add_u32 v{uT}, v{uT+1}, 4, v{uT}")
    a.vmem(f"buffer_load_dword v{uT+1}, v{uT}, {sr(sW1,4)}, 0 offen", "b1")
    a.e(f"v_cvt_pk_bf16_f32 v{uT+2}, v{uAcc}, v{uAcc+1}")
    a.e(f"v_lshlrev_b32 v{uAcc}, 16, v{uT+2}")
    a.e(f"v_and_b32 v{uAcc+1}, 0xffff0000, v{uT+2}")
    a.wait_vm("b1")
    a.e(f"v_lshlrev_b32 v{uT+2}, 16, v{uT+1}")
    a.e(f"v_and_b32 v{uT+3}, 0xffff0000, v{uT+1}")
    a.e(f"v_add_f32 v{uAcc}, v{uAcc}, v{uT+2}")
    a.e(f"v_add_f32 v{uAcc+1}, v{uAcc+1}, v{uT+3}")
    a.e(f"v_cvt_pk_bf16_f32 v{uT+2}, v{uAcc}, v{uAcc+1}")
    a.e(f"v_lshlrev_b32 v{uAcc}, 16, v{uT+2}")
    a.e(f"v_and_b32 v{uAcc+1}, 0xffff0000, v{uT+2}")
    a.e(f"v_max_f32 v{uAcc}, 0, v{uAcc}")
    a.e(f"v_max_f32 v{uAcc+1}, 0, v{uAcc+1}")
    a.e(f"v_mul_f32 v{uAcc}, v{uAcc}, v{uAcc}")
    a.e(f"v_mul_f32 v{uAcc+1}, v{uAcc+1}, v{uAcc+1}")
    a.e(f"v_cvt_pk_bf16_f32 v{uH2}, v{uAcc}, v{uAcc+1}")
    a.c("FFN stage 2: rows 32u..32u+31 of w2, lane = 8 columns")
    a.e(f"v_lshlrev_b32 v{uT+2}, 4, v{vLane}")
    for k in range(8):
        a.e(f"v_mov_b32 v{uAcc+k}, 0")
    def w2_load(j):
        a.e(f"s_mov_b32 s{sT2}, {(j>>2)*4096}")
        return f"buffer_load_dwordx4 {vr(uW+4*(j&15),4)}, v{uT+2}, {sr(sW2,4)}, s{sT2} offen offset:{(j&3)*1024}{wpol}"
    def w2_use(p):
        c_, g_ = p >> 2, p & 3
        a.e(f"v_readlane_b32 s{sT0}, v{uH2}, {16*g_ + c_}")
        j = (2*p) & 15
        for d in range(4):
            r0 = uW + 4*j + d; r1 = r0 + 4
            a.e(f"v_perm_b32 v{uT+4}, v{r1}, v{r0}, s{sPLO}")
            a.e(f"v_perm_b32 v{uT+5}, v{r1}, v{r0}, s{sPHI}")
            a.e(f"v_dot2c_f32_bf16 v{uAcc+2*d}, s{sT0}, v{uT+4}")
            a.e(f"v_dot2c_f32_bf16 v{uAcc+2*d+1}, s{sT0}, v{uT+5}")
    ffn_stream(32, w2_load, w2_use)
    a.e(f"s_lshl_b32 s{sT0}, s{sIDX}, 11")
    a.e(f"s_add_u32 s{sT1}, s{sT0}, {WS_Z}")
    a.e("s_nop 1")
    a.c("FFN partial row, stored as [half][lane][4]; once it and the cleared y row are acknowledged, raise the ready flag")
    a.e(f"buffer_store_dwordx4 {vr(uAcc,4)}, v{uOff}, {sr(sWS,4)}, s{sT1} offen sc1")
    a.e(f"buffer_store_dwordx4 {vr(uAcc+4,4)}, v{uOff}, {sr(sWS,4)}, s{sT1} offen offset:1024 sc1")
    a.e(f"s_lshl_b32 s{sT0}, s{sIDX}, 7")
    a.e(f"s_add_u32 s{sT0}, s{sT0}, {WS_FLAG}")
    a.e(f"v_mov_b32 v{uT+4}, 0")
    a.e("s_waitcnt vmcnt(0)")
    a.e(f"v_cmp_eq_u32 vcc, 0, v{vLane}")
    a.e(f"s_and_saveexec_b64 {sr(sEX,2)}, vcc")
    a.e(f"buffer_store_dword v{uEp}, v{uT+4}, {sr(sWS,4)}, s{sT0} offen sc1")
    a.e(f"s_mov_b64 exec, {sr(sEX,2)}")
    if opt.axoff & 4: a.e(f"s_mov_b32 s{sWS+2}, 0x{WS_SIZE:x}")
    stamp(2)
    a.c("gate: g = bf16(sigmoid(bf16(sum bf16(x*w))))")
    a.e(f"v_lshlrev_b32 v{uT}, 4, v{vLane}")
    srd(a, sW1, 10, None, "1024")
    a.e(f"s_lshl_b32 s{sT1}, s{sB}, 10")
    a.e(f"buffer_load_dwordx4 {vr(uW,4)}, v{uT}, {sr(sX,4)}, s{sT1} offen")
    a.e(f"buffer_load_dwordx4 {vr(uW+4,4)}, v{uT}, {sr(sW1,4)}, 0 offen")
    a.c("b2 of this lane's output column: column = 2g + (i >= 8)")
    a.e(f"s_lshl_b32 s{sT0}, s{sU}, 4")
    srd(a, sW2, 8, sT0, "16")
    a.e(f"v_lshrrev_b32 v{uT+1}, 4, v{vLane}")
    a.e(f"v_lshlrev_b32 v{uT+1}, 2, v{uT+1}")
    a.e(f"v_bfe_u32 v{uT+2}, v{vLane}, 3, 1")
    a.e(f"v_lshl_add_u32 v{uNeg}, v{uT+2}, 1, v{uT+1}")
    a.e(f"buffer_load_ushort v{uB2}, v{uNeg}, {sr(sW2,4)}, 0 offen")
    a.e("s_waitcnt vmcnt(1)")
    a.e(f"v_mov_b32 v{uG}, 0")
    for d in range(4):
        a.e(f"v_lshlrev_b32 v{uT}, 16, v{uW+d}")
        a.e(f"v_and_b32 v{uT+1}, 0xffff0000, v{uW+d}")
        a.e(f"v_lshlrev_b32 v{uT+2}, 16, v{uW+4+d}")
        a.e(f"v_and_b32 v{uT+3}, 0xffff0000, v{uW+4+d}")
        a.e(f"v_mul_f32 v{uT}, v{uT}, v{uT+2}")
        a.e(f"v_mul_f32 v{uT+1}, v{uT+1}, v{uT+3}")
        a.e(f"v_cvt_pk_bf16_f32 v{uT}, v{uT}, v{uT+1}")
        a.e(f"v_lshlrev_b32 v{uT+1}, 16, v{uT}")
        a.e(f"v_and_b32 v{uT}, 0xffff0000, v{uT}")
        a.e(f"v_add_f32 v{uG}, v{uG}, v{uT+1}")
        a.e(f"v_add_f32 v{uG}, v{uG}, v{uT}")
    def dpp_allred16(reg):
        for m in ("quad_perm:[1,0,3,2]", "quad_perm:[2,3,0,1]", "row_ror:4", "row_ror:8"):
            a.e("s_nop 1")
            a.e(f"v_add_f32_dpp v{reg}, v{reg}, v{reg} {m} {FULL}")
    dpp_allred16(uG)
    allred_rows(a, uG, uT, uT+1, "v_add_f32")
    def rbf(reg):
        a.e(f"v_cvt_pk_bf16_f32 v{reg}, v{reg}, v{reg}")
        a.e(f"v_lshlrev_b32 v{reg}, 16, v{reg}")
    rbf(uG)
    a.e(f"v_mul_f32 v{uG}, 0xbfb8aa3b, v{uG}")
    a.e(f"v_exp_f32 v{uG}, v{uG}")
    a.e("s_nop 0")
    a.e(f"v_add_f32 v{uG}, 1.0, v{uG}")
    a.e(f"v_rcp_f32 v{uG}, v{uG}")
    a.e("s_nop 0")
    rbf(uG)
    a.e(f"v_sub_f32 v{uG1}, 1.0, v{uG}")
    rbf(uG1)
    a.c("idle until the streaming waves are half way")
    a.e(f"s_mov_b32 s{sCNT}, {opt.spin}")
    a.e(f"v_mov_b32 v{uT+4}, {LDS_FLAG}")
    a.label("L_flag_poll")
    a.e(f"ds_read_b32 v{uT}, v{uT+4}")
    a.e("s_waitcnt lgkmcnt(0)")
    a.e(f"v_readfirstlane_b32 s{sT0}, v{uT}")
    a.e(f"s_cmp_eq_u32 s{sT0}, 1")
    a.e("s_cbranch_scc1 L_flag_ok")
    a.e("s_sleep 64")
    a.e(f"s_sub_u32 s{sCNT}, s{sCNT}, 1")
    a.e(f"s_cmp_lg_u32 s{sCNT}, 0")
    a.e("s_cbranch_scc1 L_flag_poll")
    a.label("L_flag_ok")
    a.c("wait for the ready flags of the 64 workgroups of this batch (lane = workgroup)")
    a.e(f"s_mov_b32 s{sCNT}, {opt.spin}")
    a.e(f"s_lshl_b32 s{sT1}, s{sB}, 13")
    a.e(f"s_add_u32 s{sT1}, s{sT1}, {WS_FLAG}")
    a.e(f"v_lshlrev_b32 v{uT+4}, 7, v{vLane}")
    a.label("L_rdy_poll")
    a.e(f"buffer_load_dword v{uT}, v{uT+4}, {sr(sWS,4)}, s{sT1} offen sc1")
    a.e("s_waitcnt vmcnt(0)")
    a.e(f"v_cmp_ne_u32 vcc, v{uT}, v{uEp}")
    a.e("s_nop 4")
    a.e("s_cbranch_vccz L_rdy_ok")
    a.e("s_sleep 32")
    a.e(f"s_sub_u32 s{sCNT}, s{sCNT}, 1")
    a.e(f"s_cmp_lg_u32 s{sCNT}, 0")
    a.e("s_cbranch_scc1 L_rdy_poll")
    a.label("L_rdy_ok")
    def reduce64_8(base):
        reduce_scatter8(a, base)
        a.e("s_nop 1")
        a.e(f"v_add_f32_dpp v{base}, v{base}, v{base} row_ror:8 row_mask:0xf bank_mask:0x3")
        a.e(f"v_add_f32_dpp v{base}, v{base+1}, v{base+1} row_ror:8 row_mask:0xf bank_mask:0xc")
        for m in ("row_half_mirror", "quad_perm:[1,0,3,2]", "quad_perm:[2,3,0,1]"):
            a.e("s_nop 1")
            a.e(f"v_add_f32_dpp v{base}, v{base}, v{base} {m} {FULL}")
    def poll(label, srd_, regs, loads, sleep):
        a.e(f"s_mov_b32 s{sCNT}, {1 if opt.axoff & 8 else opt.spin}")
        a.label(label)
        for l in loads:
            a.e(l)
        a.e("s_waitcnt vmcnt(0)")
        a.e(f"v_max3_u32 v{uT}, v{regs[0]}, v{regs[1]}, v{regs[2]}")
        rest = regs[3:]
        while rest:
            if len(rest) >= 2:
                a.e(f"v_max3_u32 v{uT}, v{uT}, v{rest[0]}, v{rest[1]}"); rest = rest[2:]
            else:
                a.e(f"v_max_u32 v{uT}, v{uT}, v{rest[0]}"); rest = rest[1:]
        a.e(f"v_cmp_eq_u32 vcc, -1, v{uT}")
        a.e("s_nop 4")
        a.e(f"s_cbranch_vccz {label}_ok")
        if sleep: a.e(f"s_sleep {sleep}")
        a.e(f"s_sub_u32 s{sCNT}, s{sCNT}, 1")
        a.e(f"s_cmp_lg_u32 s{sCNT}, 0")
        a.e(f"s_cbranch_scc1 {label}")
        a.label(label + "_ok")
    a.c("gather the FFN partial rows of this batch: lane = row, 8 columns of group u")
    a.e(f"s_lshl_b32 s{sT0}, s{sB}, 17")
    a.e(f"s_lshl_b32 s{sT1}, s{sU}, 4")
    a.e(f"s_add_u32 s{sT2}, s{sT0}, s{sT1}")
    a.e(f"s_add_u32 s{sT2}, s{sT2}, {WS_Z}")
    srd(a, sW1, 22, sT2, f"{56*2048}")
    a.e(f"s_sub_u32 s{sW1+2}, s{sW1+2}, s{sT1}")
    a.e(f"s_mul_i32 s{sT0}, s{sB}, {64*YROW}")
    srd(a, sW2, 22, sT0, f"{64*YROW}")
    a.e(f"v_lshlrev_b32 v{uOff}, 11, v{vLane}")
    a.e(f"buffer_load_dwordx4 {vr(uZ,4)}, v{uOff}, {sr(sW1,4)}, 0 offen sc1")
    a.e(f"buffer_load_dwordx4 {vr(uZ+4,4)}, v{uOff}, {sr(sW1,4)}, 0 offen offset:1024 sc1")
    a.e("s_waitcnt vmcnt(0)")
    reduce64_8(uZ)
    rbf(uZ)
    a.e(f"v_lshlrev_b32 v{uB2}, 16, v{uB2}")
    a.e(f"v_add_f32 v{uZ}, v{uZ}, v{uB2}")
    rbf(uZ)
    a.e(f"v_mul_f32 v{uG1}, v{uG1}, v{uZ}")
    rbf(uG1)
    a.e(f"s_lshl_b32 s{sT0}, s{sB}, 10")
    a.e(f"s_lshl_b32 s{sT1}, s{sU}, 4")
    a.e(f"s_add_u32 s{sT0}, s{sT0}, s{sT1}")
    srd(a, sOUT, 12, sT0, "16")
    a.e(f"s_mov_b32 s{sT0}, {YROW}")
    a.e(f"v_mul_lo_u32 v{uT+6}, s{sT0}, v{vLane}")
    a.e(f"s_lshl_b32 s{sT3}, s{sU}, 5")
    stamp(3)
    a.e("s_barrier")
    stamp(4)
    a.c("wait for the m/l pairs of this batch (4 lines), then gather the attention partial rows")
    yv = uW
    if opt.mlpoll:
        poll("L_ml_poll", sW2, [yv+8, yv+9, yv+9],
             [f"buffer_load_dwordx2 {vr(yv+8,2)}, v{uT+6}, {sr(sW2,4)}, 0 offen offset:2048 sc1"], opt.ysleep)
    poll("L_y_poll", sW2, list(range(yv, yv+10)),
         [f"buffer_load_dwordx4 {vr(yv,4)}, v{uT+6}, {sr(sW2,4)}, s{sT3} offen sc1",
          f"buffer_load_dwordx4 {vr(yv+4,4)}, v{uT+6}, {sr(sW2,4)}, s{sT3} offen offset:16 sc1",
          f"buffer_load_dwordx2 {vr(yv+8,2)}, v{uT+6}, {sr(sW2,4)}, 0 offen offset:2048 sc1"], opt.ysleep)
    stamp(5)
    m_, l_ = yv+8, yv+9
    a.e(f"v_mov_b32_dpp v{uT}, v{m_} quad_perm:[1,0,3,2] {FULL}")
    a.e(f"v_mov_b32_dpp v{uT+1}, v{l_} quad_perm:[1,0,3,2] {FULL}")
    a.e(f"v_max_f32 v{uT+2}, v{m_}, v{uT}")
    a.e(f"v_sub_f32 v{uT+3}, v{m_}, v{uT+2}")
    a.e(f"v_sub_f32 v{uT}, v{uT}, v{uT+2}")
    a.e(f"v_exp_f32 v{uT+3}, v{uT+3}")
    a.e(f"v_exp_f32 v{uT}, v{uT}")
    a.e("s_nop 0")
    a.e(f"v_mul_f32 v{uT+2}, v{uT+3}, v{l_}")
    a.e(f"v_fma_f32 v{uT+2}, v{uT}, v{uT+1}, v{uT+2}")
    a.e(f"v_rcp_f32 v{uT+2}, v{uT+2}")
    a.e("s_nop 0")
    a.e(f"v_mul_f32 v{uT+2}, v{uT+2}, v{uT+3}")
    for k in range(8):
        a.e(f"v_mul_f32 v{yv+k}, v{uT+2}, v{yv+k}")
    a.e("s_nop 1")
    reduce64_8(yv)
    rbf(yv)
    a.e(f"v_mul_f32 v{yv}, v{uG}, v{yv}")
    rbf(yv)
    a.e(f"v_add_f32 v{yv}, v{yv}, v{uG1}")
    a.e(f"v_cvt_pk_bf16_f32 v{yv}, v{yv}, v{yv}")
    a.e(f"v_and_b32 v{uT}, 7, v{vLane}")
    a.e(f"v_cmp_eq_u32 vcc, 0, v{uT}")
    a.e(f"s_and_saveexec_b64 {sr(sEX,2)}, vcc")
    a.e(f"buffer_store_short v{yv}, v{uNeg}, {sr(sOUT,4)}, 0 offen")
    a.c("every workgroup this result depends on has read the epoch word: leave the new value for the next launch")
    a.e(f"s_cmp_lg_u32 s{sIDX if opt.coop else sU}, 0")
    a.e("s_cbranch_scc1 L_no_epoch")
    epoch_addr()
    a.e(f"v_mov_b32 v{uT+4}, 0")
    a.e(f"buffer_store_dword v{uEp}, v{uT+4}, {sr(sWS,4)}, s{sT0} offen sc1")
    a.label("L_no_epoch")
    if opt.stamps:
        a.e(f"s_mov_b64 exec, {sr(sEX,2)}")
        stamp(6)
        a.e("s_waitcnt vmcnt(0)")
        for i in (7, 8, 9): stamp(i)
        dump_stamps(uT, uT+2, vLane, 10)
    a.label("L_end")
    a.e("s_endpgm")
    a.label("L_code_end")

    out = HEADER
    out += f"; @launch grid=(256,1,1) block=(576,1,1) lds={LDS_SIZE}\n"
    out += '.amdgcn_target "amdgcn-amd-amdhsa--gfx950"\n.text\n' + a.text()
    out += f""".section .rodata,"a"
.p2align 6
.amdhsa_kernel {K1}
  .amdhsa_next_free_vgpr {NV}
  .amdhsa_next_free_sgpr 102
  .amdhsa_accum_offset {NV}
  .amdhsa_group_segment_fixed_size 0
  .amdhsa_kernarg_size 112
  .amdhsa_user_sgpr_count 2
  .amdhsa_user_sgpr_kernarg_segment_ptr 1
  .amdhsa_system_sgpr_workgroup_id_x 1
  .amdhsa_float_denorm_mode_32 3
.end_amdhsa_kernel
"""
    return out

def main():
    ap = argparse.ArgumentParser()
    ap.add_argument("-o", default="-")
    ap.add_argument("--policy", default="nt")
    ap.add_argument("--wpolicy", default="")
    ap.add_argument("--stamps", action="store_true")
    ap.add_argument("--la", type=float, default=3)
    ap.add_argument("--p0", type=int, default=16)
    ap.add_argument("--rot", type=int, default=1)
    ap.add_argument("--wo", type=int, default=1)
    ap.add_argument("--q", type=int, default=1)
    ap.add_argument("--aux", type=int, default=1)
    ap.add_argument("--nocomp", type=int, default=0)
    ap.add_argument("--map", default="hs")
    ap.add_argument("--pa", type=int, default=4)
    ap.add_argument("--pb", type=int, default=16)
    ap.add_argument("--ilv", type=int, default=2)
    ap.add_argument("--axoff", type=int, default=0)
    ap.add_argument("--pf", type=int, default=0)
    ap.add_argument("--qdbg", type=int, default=0)
    ap.add_argument("--prio", type=int, default=0)
    ap.add_argument("--coop", type=int, default=0)
    ap.add_argument("--auxwin", type=int, default=2)
    ap.add_argument("--spin", type=int, default=200000)
    ap.add_argument("--ysleep", type=int, default=4)
    ap.add_argument("--ztile", type=int, default=8)
    ap.add_argument("--mlpoll", type=int, default=0)
    opt = ap.parse_args()
    out = gen(opt)
    if opt.o == "-": sys.stdout.write(out)
    else: open(opt.o, "w").write(out)

if __name__ == "__main__":
    main()
```

```python
import sys, argparse, struct

NAME = "gated_mix__mha_block_cached__dense_activation_squared_relu__decode"
HEADER = """; Kernarg layout (112 bytes, ptrs only, base s[0:1]):
"""

class Asm:
    def __init__(self):
        self.lines = []
        self.vmq = []
        self.done = set()
    def e(self, s): self.lines.append("    " + s)
    def c(self, s): self.lines.append("    ; " + s)
    def label(self, l): self.lines.append(l + ":")
    def raw(self, s): self.lines.append(s)
    def vmem(self, s, tag):
        self.e(s); self.vmq.append(tag)
    def wait_vm(self, tag):
        if tag not in self.vmq:
            assert tag in self.done, tag
            return
        idx = max(i for i, t in enumerate(self.vmq) if t == tag)
        n = len(self.vmq) - idx - 1
        assert n <= 63, n
        self.e(f"s_waitcnt vmcnt({n})")
        self.done.update(self.vmq[:idx + 1])
        self.vmq = self.vmq[idx + 1:]
    def wait_vm_all(self):
        self.e("s_waitcnt vmcnt(0)"); self.vmq = []
    def text(self): return "\n".join(self.lines) + "\n"

def vr(b, n): return f"v[{b}:{b+n-1}]"
def sr(b, n): return f"s[{b}:{b+n-1}]"
def f32bits(x): return struct.unpack("<I", struct.pack("<f", x))[0]
SCALE_LOG2E = 0.08838834764831845 * 1.4426950408889634
FULL = "row_mask:0xf bank_mask:0xf"

YROW = 2176
WS_Y = 0
WS_Z = 640 * 1024
WS_FLAG = WS_Z + 512 * 1024
WS_QX = WS_FLAG + 256 * 128
WS_EPOCH = WS_QX + 256 * 256
WS_SIZE = WS_EPOCH + 4 * 128
WS_STAMP = 2 * 1024 * 1024
assert 256 * YROW <= WS_Z

sK, sV, sWQ, sWO, sX, sW1, sW2, sWS = 24, 28, 32, 36, 40, 44, 48, 52
sH, sB, sS, sW, sU, sIDX = 56, 57, 58, 59, 60, 61
sT0, sT1, sT2, sT3 = 62, 63, 64, 65
sEX = 66
sDBG = 68
sPLO, sPHI, sC = 72, 73, 74
sCNT = 75
sCG = 78
sPAR = 76
sOUT = 28
sST = 82

def srd(a, d, plo, off_sgpr, nrec):
    if off_sgpr is None:
        a.e(f"s_mov_b32 s{d}, s{plo}")
        a.e(f"s_and_b32 s{d+1}, s{plo+1}, 0xffff")
    else:
        a.e(f"s_add_u32 s{d}, s{plo}, s{off_sgpr}")
        a.e(f"s_addc_u32 s{d+1}, s{plo+1}, 0")
        a.e(f"s_and_b32 s{d+1}, s{d+1}, 0xffff")
    a.e(f"s_mov_b32 s{d+2}, {nrec}")
    a.e(f"s_mov_b32 s{d+3}, 0x00020000")

def reduce_scatter8(a, base):
    for k in range(4):
        a.e(f"v_permlane32_swap_b32 v{base+k}, v{base+4+k}")
    a.e("s_nop 1")
    for k in range(4):
        a.e(f"v_add_f32 v{base+k}, v{base+k}, v{base+4+k}")
    a.e("s_nop 1")
    for k in range(2):
        a.e(f"v_permlane16_swap_b32 v{base+k}, v{base+2+k}")
    a.e("s_nop 1")
    for k in range(2):
        a.e(f"v_add_f32 v{base+k}, v{base+k}, v{base+2+k}")

def allred_rows(a, reg, t0, t1, op):
    a.e(f"v_mov_b32 v{t0}, v{reg}")
    a.e(f"v_mov_b32 v{t1}, v{reg}")
    a.e("s_nop 1")
    a.e(f"v_permlane32_swap_b32 v{t0}, v{t1}")
    a.e("s_nop 1")
    a.e(f"{op} v{t0}, v{t0}, v{t1}")
    a.e(f"v_mov_b32 v{t1}, v{t0}")
    a.e("s_nop 1")
    a.e(f"v_permlane16_swap_b32 v{t0}, v{t1}")
    a.e("s_nop 1")
    a.e(f"{op} v{reg}, v{t0}, v{t1}")

def gen(opt):
    a = Asm()
    pol = (" " + opt.policy) if opt.policy else ""
    wpol = (" " + opt.wpolicy) if opt.wpolicy else ""
    LAF, P0 = opt.la, opt.p0
    LA = int(LAF)
    sched = {}
    if opt.lasched:
        for item in opt.lasched.split(","):
            t_, v_ = item.split(":")
            sched[int(t_)] = float(v_)
    def la_of_tile(t):
        v = LAF
        for t_ in sorted(sched):
            if t >= t_: v = sched[t_]
        return v
    def la_at(g):
        v = la_of_tile(g // 16)
        base = int(v); fr = v - base
        return base + (1 if int((g + 1) * fr + 1e-9) > int(g * fr + 1e-9) else 0)
    assert LA <= P0 <= 16
    in_aux = [False]
    def stamp(i):
        if opt.stamps and not (opt.qdbg and in_aux[0] and 1 <= i <= 5):
            a.e(f"s_memrealtime {sr(sST+2*i,2)}")
    def qstamp(i):
        if opt.stamps and opt.qdbg:
            a.e(f"s_memrealtime {sr(sST+2*i,2)}")
    def dump_stamps(vT, vS, vLane, n):
        a.e("s_waitcnt lgkmcnt(0)")
        a.e(f"s_mov_b32 s{sWS+2}, 0x1000000")
        a.e(f"s_lshl_b32 s{sT0}, s2, 4")
        a.e(f"s_add_u32 s{sT0}, s{sT0}, s{sW}")
        a.e(f"s_lshl_b32 s{sT0}, s{sT0}, 7")
        a.e(f"s_add_u32 s{sT0}, s{sT0}, {WS_STAMP}")
        a.e(f"v_cmp_eq_u32 vcc, 0, v{vLane}")
        a.e(f"s_and_saveexec_b64 {sr(sEX,2)}, vcc")
        for i in range(n):
            a.e(f"v_mov_b32 v{vT}, {i*8}")
            a.e(f"v_mov_b32 v{vS}, s{sST+2*i}")
            a.e(f"v_mov_b32 v{vS+1}, s{sST+2*i+1}")
            a.e(f"buffer_store_dwordx2 {vr(vS,2)}, v{vT}, {sr(sWS,4)}, s{sT0} offen")
            a.e("s_nop 1")

    vLane, vK0, vK1 = 1, 2, 3
    vQ, vO, vS = 4, 8, 16
    vM, vL, vPlo, vPhi, vAl = 24, 25, 26, 27, 28
    vT = 29
    vL16, vA0, vA1 = 34, 35, 36
    vKb, vVb, vWQ = 40, 72, 104
    NV = 168
    LDS_QP, LDS_QF, LDS_OP, LDS_ML, LDS_FLAG = (0, 2048, 4096, 8192, 8320) if opt.coop else (0, 0, 4096, 8192, 8320)
    LDS_SIZE = 8448

    K1 = f"{NAME}_kernel"
    a.raw(f".globl {K1}")
    a.raw(".p2align 8")
    a.raw(f".type {K1},@function")
    a.label(K1)
    a.e("s_cmp_ge_u32 s2, 256")
    a.e("s_cbranch_scc1 L_end")
    stamp(0)
    a.e("s_load_dwordx16 s[4:19], s[0:1], 0")
    a.e("s_load_dwordx2 s[20:21], s[0:1], 64")
    a.e("s_load_dwordx2 s[22:23], s[0:1], 104")
    a.c("workgroup id -> head, batch, key half")
    a.e(f"v_lshrrev_b32 v{vT}, 6, v0")
    a.e(f"s_and_b32 s{sT0}, s2, 7")
    a.e(f"s_lshr_b32 s{sT1}, s2, 3")
    a.e(f"v_readfirstlane_b32 s{sW}, v{vT}")
    a.e(f"s_lshr_b32 s{sT2}, s{sT1}, 3")
    if opt.map == "g3":
        a.e(f"s_lshl_b32 s{sH}, s{sT0}, 2")
        a.e(f"s_add_u32 s{sH}, s{sH}, s{sT2}")
    else:
        a.e(f"s_lshl_b32 s{sH}, s{sT2}, 3")
        a.e(f"s_add_u32 s{sH}, s{sH}, s{sT0}")
    a.e(f"s_and_b32 s{sT1}, s{sT1}, 7")
    a.e(f"s_lshr_b32 s{sB}, s{sT1}, 1")
    a.e(f"s_and_b32 s{sS}, s{sT1}, 1")
    a.e(f"s_lshl_b32 s{sU}, s{sH}, 1")
    a.e(f"s_add_u32 s{sU}, s{sU}, s{sS}")
    a.e(f"s_lshl_b32 s{sIDX}, s{sB}, 6")
    a.e(f"s_add_u32 s{sIDX}, s{sIDX}, s{sU}")
    a.e(f"v_and_b32 v{vLane}, 63, v0")
    a.e(f"s_mov_b32 s{sPLO}, 0x05040100")
    a.e(f"s_mov_b32 s{sPHI}, 0x07060302")
    a.e(f"s_cmp_eq_u32 s{sW}, 8")
    a.e("s_cbranch_scc1 L_aux")

    if opt.coop:
        vWX, vXQ, vAcc = vWQ, vWQ + 8, vWQ + 12
        a.e(f"v_lshrrev_b32 v{vT}, 1, v{vLane}")
        a.e(f"v_and_b32 v{vT+1}, 1, v{vLane}")
        a.e(f"s_lshl_b32 s{sT0}, s{sW}, 5")
        a.e(f"v_add_u32 v{vT+2}, s{sT0}, v{vT}")
        a.e(f"v_lshlrev_b32 v{vT+3}, 14, v{vT+2}")
        a.e(f"v_lshl_add_u32 v{vT+3}, v{vT+1}, 4, v{vT+3}")
        a.e(f"v_lshlrev_b32 v{vT+2}, 2, v{vT+2}")
        a.e(f"v_lshlrev_b32 v{vL16}, 4, v{vLane}")
        a.e(f"s_lshl_b32 s{sT0}, s{sW}, 13")
        a.e(f"v_add_u32 v{vK0}, s{sT0}, v{vL16}")
        a.e(f"v_add_u32 v{vK1}, 0x1000, v{vK0}")
        a.e(f"s_lshl_b32 s{sT0}, s{sH}, 8")
        a.e(f"s_lshl_b32 s{sT1}, s{sT1}, 5")
        a.e(f"s_add_u32 s{sT0}, s{sT0}, s{sT1}")
        a.e(f"s_lshl_b32 s{sT1}, s{sB}, 5")
        a.e(f"s_add_u32 s{sT1}, s{sT1}, s{sH}")
        a.e(f"s_lshl_b32 s{sT1}, s{sT1}, 1")
        a.e(f"s_add_u32 s{sT1}, s{sT1}, s{sS}")
        a.e(f"s_lshl_b32 s{sT1}, s{sT1}, 20")
        a.e(f"s_mov_b32 s{sT2}, 0x2000")
        a.e("s_waitcnt lgkmcnt(0)")
        srd(a, sWQ, 10, sT0, "0x400000")
        a.e(f"s_sub_u32 s{sWQ+2}, s{sWQ+2}, s{sT0}")
        srd(a, sX, 4, None, "0x1000")
        a.vmem(f"buffer_load_dwordx4 {vr(vWX,4)}, v{vT+3}, {sr(sWQ,4)}, 0 offen{wpol}", "wq0")
        a.vmem(f"buffer_load_dwordx4 {vr(vWX+4,4)}, v{vT+3}, {sr(sWQ,4)}, s{sT2} offen{wpol}", "wq1")
        for b_ in range(4):
            a.vmem(f"buffer_load_dword v{vXQ+b_}, v{vT+2}, {sr(sX,4)}, 0 offen offset:{b_*1024}", f"x{b_}")
        srd(a, sK, 6, sT1, "0x100000")
        srd(a, sV, 8, sT1, "0x100000")
        def slot_reg(t, n):
            if t == 1 and n < opt.ext: return vWQ + 4*n
            return (vKb if n < 8 else vVb) + 4*(n & 7)
        def slot_load(n, t=0):
            j = n & 7
            s_ = sK if n < 8 else sV
            return f"buffer_load_dwordx4 {vr(slot_reg(t, n),4)}, v{vK0+(j>>2)}, {sr(s_,4)}, 0 offen offset:{(j&3)*1024}{pol}"
        NT = 16
        issued = 0
        def issue_upto(g):
            nonlocal issued
            while issued <= g and issued < NT * 16:
                t, n = divmod(issued, 16)
                if n == 0 and t > 0:
                    a.e(f"v_add_u32 v{vK0}, 0x10000, v{vK0}")
                    a.e(f"v_add_u32 v{vK1}, 0x10000, v{vK1}")
                a.vmem(slot_load(n, t), f"t{t}n{n}")
                issued += 1
        issue_upto(opt.pa - 1)
        a.c("remaining descriptors and lane constants")
        a.e(f"s_lshl_b32 s{sT0}, s{sH}, 17")
        a.e(f"s_lshl_b32 s{sT2}, s{sW}, 7")
        a.e(f"s_add_u32 s{sT0}, s{sT0}, s{sT2}")
        srd(a, sWO, 12, sT0, "0x20000")
        a.e(f"s_sub_u32 s{sWO+2}, s{sWO+2}, s{sT2}")
        srd(a, sWS, 22, None, f"0x{WS_SIZE:x}")
        a.e(f"s_mov_b32 s{sC}, 0x{f32bits(SCALE_LOG2E):08x}")
        a.e(f"s_mov_b32 s{sPAR}, 0xaaaaaaaa")
        a.e(f"s_mov_b32 s{sPAR+1}, 0xaaaaaaaa")
        a.e(f"v_lshrrev_b32 v{vT}, 4, v{vLane}")
        a.e(f"v_and_b32 v{vT+1}, 15, v{vLane}")
        a.e(f"v_lshlrev_b32 v{vA0}, 3, v{vT}")
        a.e(f"v_lshl_add_u32 v{vA0}, v{vT+1}, 5, v{vA0}")
        a.e(f"v_lshrrev_b32 v{vA1}, 3, v{vLane}")
        a.e(f"v_lshlrev_b32 v{vA1}, 11, v{vA1}")
        a.e(f"v_and_b32 v{vT+2}, 7, v{vLane}")
        a.e(f"v_lshl_add_u32 v{vA1}, v{vT+2}, 4, v{vA1}")
        a.e(f"v_lshlrev_b32 v{vT+2}, 6, v{vT}")
        a.e(f"v_and_b32 v{vT+3}, 1, v{vLane}")
        a.e(f"v_lshl_add_u32 v{vT+2}, v{vT+3}, 5, v{vT+2}")
        a.e(f"s_lshl_b32 s{sT0}, s{sW}, 8")
        a.e(f"v_add_u32 v{vT+2}, s{sT0}, v{vT+2}")
        stamp(1)
        a.c("q piece: 16 columns x 4 batches over this wave's 64 rows of wq")
        a.wait_vm("x3")
        for d in range(4):
            a.e(f"v_perm_b32 v{vT}, v{vWX+4+d}, v{vWX+d}, s{sPLO}")
            a.e(f"v_perm_b32 v{vT+1}, v{vWX+4+d}, v{vWX+d}, s{sPHI}")
            for b_ in range(4):
                a.e(f"v_dot2_f32_bf16 v{vAcc+8*b_+2*d}, v{vT}, v{vXQ+b_}, 0")
                a.e(f"v_dot2_f32_bf16 v{vAcc+8*b_+2*d+1}, v{vT+1}, v{vXQ+b_}, 0")
        a.e("s_nop 2")
        for k in range(16):
            a.e(f"v_permlane32_swap_b32 v{vAcc+k}, v{vAcc+16+k}")
        for k in range(16):
            a.e(f"v_add_f32 v{vAcc+k}, v{vAcc+k}, v{vAcc+16+k}")
        for k in range(8):
            a.e(f"v_permlane16_swap_b32 v{vAcc+k}, v{vAcc+8+k}")
        for k in range(8):
            a.e(f"v_add_f32 v{vAcc+k}, v{vAcc+k}, v{vAcc+8+k}")
        for m in ("row_ror:8", "row_ror:4", "quad_perm:[2,3,0,1]"):
            for k in range(8):
                a.e(f"v_add_f32_dpp v{vAcc+k}, v{vAcc+k}, v{vAcc+k} {m} {FULL}")
        a.e(f"ds_write_b128 v{vT+2}, {vr(vAcc,4)} offset:{LDS_QP}")
        a.e(f"ds_write_b128 v{vT+2}, {vr(vAcc+4,4)} offset:{LDS_QP+16}")
        stamp(2)
        a.e("s_waitcnt lgkmcnt(0)")
        a.e("s_barrier")
        if opt.pace:
            while issued < P0 + opt.ext:
                if issued - opt.pace >= 0:
                    tt, nn = divmod(issued - opt.pace, 16)
                    a.wait_vm(f"t{tt}n{nn}")
                issue_upto(issued)
        else:
            issue_upto(P0 + opt.ext - 1)
        for k in range(8):
            a.e(f"v_mov_b32 v{vO+k}, 0")
        a.e(f"v_mov_b32 v{vM}, 0xff7fffff")
        a.e(f"v_mov_b32 v{vL}, 0")
        a.e(f"v_and_b32 v{vT}, 15, v{vLane}")
        a.e(f"v_lshlrev_b32 v{vT}, 4, v{vT}")
        a.e("s_barrier")
        a.e(f"ds_read_b128 {vr(vQ,4)}, v{vT} offset:{LDS_QF}")
        a.e("s_waitcnt lgkmcnt(0)")
        stamp(3)

    else:
        if opt.rot:
            a.e(f"s_add_u32 s{sT3}, s{sW}, s{sT1}")
            a.e(f"s_and_b32 s{sT3}, s{sT3}, 7")
        else:
            a.e(f"s_mov_b32 s{sT3}, s{sW}")
        a.e(f"v_lshrrev_b32 v{vT}, 4, v{vLane}")
        a.e(f"v_and_b32 v{vT+1}, 15, v{vLane}")
        a.e(f"v_lshlrev_b32 v{vT+2}, 5, v{vT}")
        a.e(f"v_lshlrev_b32 v{vT+3}, 17, v{vT}")
        a.e(f"v_lshl_add_u32 v{vT+3}, v{vT+1}, 4, v{vT+3}")
        a.e(f"v_lshlrev_b32 v{vA0}, 3, v{vT}")
        a.e(f"v_lshl_add_u32 v{vA0}, v{vT+1}, 5, v{vA0}")
        a.e(f"v_lshlrev_b32 v{vL16}, 4, v{vLane}")
        a.e(f"s_lshl_b32 s{sT0}, s{sW}, 13")
        a.e(f"v_add_u32 v{vK0}, s{sT0}, v{vL16}")
        a.e(f"v_add_u32 v{vK1}, 0x1000, v{vK0}")
        a.e(f"s_lshl_b32 s{sT1}, s{sB}, 10")
        a.e(f"s_lshl_b32 s{sT2}, s{sT3}, 7")
        a.e(f"s_add_u32 s{sT1}, s{sT1}, s{sT2}")
        a.e(f"s_lshl_b32 s{sT2}, s{sT3}, 19")
        a.e(f"s_lshl_b32 s{sT0}, s{sH}, 8")
        a.e("s_waitcnt lgkmcnt(0)")
        srd(a, sX, 4, None, "0x1000")
        srd(a, sWQ, 10, sT0, "0x400000")
        a.e(f"s_sub_u32 s{sWQ+2}, s{sWQ+2}, s{sT0}")
        vXQ = vS
        if opt.q:
            a.vmem(f"buffer_load_dwordx4 {vr(vXQ,4)}, v{vT+2}, {sr(sX,4)}, s{sT1} offen", "xq")
            a.vmem(f"buffer_load_dwordx4 {vr(vXQ+4,4)}, v{vT+2}, {sr(sX,4)}, s{sT1} offen offset:16", "xq")
        a.e(f"s_lshl_b32 s{sT0}, s{sB}, 5")
        a.e(f"s_add_u32 s{sT0}, s{sT0}, s{sH}")
        a.e(f"s_lshl_b32 s{sT0}, s{sT0}, 1")
        a.e(f"s_add_u32 s{sT0}, s{sT0}, s{sS}")
        a.e(f"s_lshl_b32 s{sT0}, s{sT0}, 20")
        srd(a, sK, 6, sT0, "0x100000")
        srd(a, sV, 8, sT0, "0x100000")
        def slot_reg(t, n):
            if t == 1 and n < opt.ext: return vWQ + 4*n
            return (vKb if n < 8 else vVb) + 4*(n & 7)
        def slot_load(n, t=0):
            j = n & 7
            s_ = sK if n < 8 else sV
            return f"buffer_load_dwordx4 {vr(slot_reg(t, n),4)}, v{vK0+(j>>2)}, {sr(s_,4)}, 0 offen offset:{(j&3)*1024}{pol}"
        NT = 16
        issued = 0
        def issue_upto(g):
            nonlocal issued
            while issued <= g and issued < NT * 16:
                t, n = divmod(issued, 16)
                if n == 0 and t > 0:
                    a.e(f"v_add_u32 v{vK0}, 0x10000, v{vK0}")
                    a.e(f"v_add_u32 v{vK1}, 0x10000, v{vK1}")
                a.vmem(slot_load(n, t), f"t{t}n{n}")
                issued += 1
        PA, PB = opt.pa, opt.pb
        for j in range(16 if opt.q else 0):
            a.vmem(f"buffer_load_dwordx4 {vr(vWQ+4*j,4)}, v{vT+3}, {sr(sWQ,4)}, s{sT2} offen{wpol}", f"wq{j}")
            if j < 15:
                a.e(f"s_add_u32 s{sT2}, s{sT2}, 0x2000")
            if (j + 1) % opt.ilv == 0 and issued < PA:
                issue_upto(issued)
        issue_upto(min(P0, PA + PB) - 1)
        a.e(f"s_lshl_b32 s{sT0}, s{sH}, 17")
        a.e(f"s_lshl_b32 s{sT2}, s{sW}, 7")
        a.e(f"s_add_u32 s{sT0}, s{sT0}, s{sT2}")
        srd(a, sWO, 12, sT0, "0x20000")
        a.e(f"s_sub_u32 s{sWO+2}, s{sWO+2}, s{sT2}")
        a.e(f"v_lshrrev_b32 v{vA1}, 3, v{vLane}")
        a.e(f"v_lshlrev_b32 v{vA1}, 11, v{vA1}")
        a.e(f"v_and_b32 v{vT}, 7, v{vLane}")
        a.e(f"v_lshl_add_u32 v{vA1}, v{vT}, 4, v{vA1}")
        srd(a, sWS, 22, None, f"0x{WS_SIZE:x}")
        a.e(f"s_mov_b32 s{sC}, 0x{f32bits(SCALE_LOG2E):08x}")
        a.e(f"s_mov_b32 s{sPAR}, 0xaaaaaaaa")
        a.e(f"s_mov_b32 s{sPAR+1}, 0xaaaaaaaa")
        for k in range(8):
            a.e(f"v_mov_b32 v{vO+k}, 0")
        stamp(1)
        a.c("q partial sums over this wave's 64 rows of wq")
        for p in range(8 if opt.q else 0):
            a.wait_vm(f"wq{2*p+1}")
            for d in range(4):
                r0 = vWQ + 8*p + d
                r1 = vWQ + 8*p + 4 + d
                a.e(f"v_perm_b32 v{vT}, v{r1}, v{r0}, s{sPLO}")
                a.e(f"v_perm_b32 v{vT+1}, v{r1}, v{r0}, s{sPHI}")
                a.e(f"v_dot2c_f32_bf16 v{vO+2*d}, v{vT}, v{vXQ+p}")
                a.e(f"v_dot2c_f32_bf16 v{vO+2*d+1}, v{vT+1}, v{vXQ+p}")
            if issued < P0: issue_upto(issued)
        issue_upto(P0 - 1)
        if opt.preext:
            issue_upto(P0 + opt.preext - 1)
        a.e(f"s_lshl_b32 s{sT0}, s{sW}, 9")
        a.e(f"v_add_u32 v{vT+2}, s{sT0}, v{vA0}")
        a.e("s_nop 0")
        reduce_scatter8(a, vO)
        a.e(f"ds_write_b64 v{vT+2}, {vr(vO,2)} offset:{LDS_QP}")
        stamp(2)
        a.e("s_waitcnt lgkmcnt(0)")
        a.e("s_barrier")
        if opt.ext:
            assert P0 == 16
            issue_upto(15 + opt.ext)
        a.c("q: lane (g,i) sums columns 8i+2g, 8i+2g+1 over the 8 waves, then the rows exchange their pairs")
        for x in range(8):
            a.e(f"ds_read_b64 {vr(vS+ (2*x if x < 4 else 0), 2) if x < 4 else vr(vO+2*(x-4), 2)}, v{vA0} offset:{LDS_QP + x*512}")
        a.e("s_waitcnt lgkmcnt(0)")
        for k in range(2):
            a.e(f"v_add_f32 v{vS+k}, v{vS+k}, v{vS+2+k}")
            a.e(f"v_add_f32 v{vS+4+k}, v{vS+4+k}, v{vS+6+k}")
            a.e(f"v_add_f32 v{vO+k}, v{vO+k}, v{vO+2+k}")
            a.e(f"v_add_f32 v{vO+4+k}, v{vO+4+k}, v{vO+6+k}")
        for k in range(2):
            a.e(f"v_add_f32 v{vS+k}, v{vS+k}, v{vS+4+k}")
            a.e(f"v_add_f32 v{vO+k}, v{vO+k}, v{vO+4+k}")
        for k in range(2):
            a.e(f"v_add_f32 v{vS+k}, v{vS+k}, v{vO+k}")
        a.e(f"v_cvt_pk_bf16_f32 v{vQ}, v{vS}, v{vS+1}")
        a.e(f"v_mov_b32 v{vQ+1}, v{vQ}")
        a.e("s_nop 1")
        a.e(f"v_permlane16_swap_b32 v{vQ}, v{vQ+1}")
        a.e("s_nop 1")
        a.e(f"v_mov_b32 v{vQ+2}, v{vQ}")
        a.e(f"v_mov_b32 v{vQ+3}, v{vQ+1}")
        a.e("s_nop 1")
        a.e(f"v_permlane32_swap_b32 v{vQ}, v{vQ+2}")
        a.e(f"v_permlane32_swap_b32 v{vQ+1}, v{vQ+3}")
        for k in range(8):
            a.e(f"v_mov_b32 v{vO+k}, 0")
        a.e(f"v_mov_b32 v{vM}, 0xff7fffff")
        a.e(f"v_mov_b32 v{vL}, 0")
        stamp(3)


    def pos(j): return 4*(j >> 1) + (j & 1)
    def wo_load(j):
        a.e(f"s_mov_b32 s{sT2}, {(16*(j>>1) + (j&1))*1024}")
        a.vmem(f"buffer_load_dwordx4 {vr(vWQ+4*j,4)}, v{vA1}, {sr(sWO,4)}, s{sT2} offen{wpol}", f"wo{j}")
    def wo_perm(p):
        for d in range(4):
            r0 = vWQ + 8*p + d
            r1 = vWQ + 8*p + 4 + d
            a.e(f"v_perm_b32 v{vT}, v{r1}, v{r0}, s{sPLO}")
            a.e(f"v_perm_b32 v{r1}, v{r1}, v{r0}, s{sPHI}")
            a.e(f"v_mov_b32 v{r0}, v{vT}")
    for t in range(NT):
        a.c(f"tile {t}")
        if t == 1: stamp(4)
        if t == opt.ztile:
            a.c("tell the auxiliary wave that the FFN rows of all workgroups are long due (wave 0 only)")
            a.e(f"s_cmp_lg_u32 s{sW}, 0")
            a.e(f"s_cbranch_scc1 L_noflag")
            a.e(f"v_mov_b32 v{vT}, {LDS_FLAG}")
            a.e(f"v_mov_b32 v{vT+1}, 1")
            a.e(f"ds_write_b32 v{vT}, v{vT+1}")
            a.label("L_noflag")
        for j in range(8):
            a.wait_vm(f"t{t}n{j}")
            issue_upto(16*t + j + la_at(16*t + j))
            if j == 0 and opt.wot <= t < opt.wot + 8 and opt.wo:
                wo_load(2*(t-opt.wot)); wo_load(2*(t-opt.wot)+1)
            if opt.nocomp & 1: continue
            kr = slot_reg(t, j)
            a.e(f"v_dot2_f32_bf16 v{vS+j}, v{kr}, v{vQ}, 0")
            for d in range(1, 4):
                a.e(f"v_dot2_f32_bf16 v{vS+j}, v{kr+d}, v{vQ+d}, v{vS+j}")
        mark = len(a.lines)
        a.e("s_nop 2")
        for j in range(4):
            a.e(f"v_add_f32_dpp v{vS+j}, v{vS+j}, v{vS+j} row_ror:8 row_mask:0xf bank_mask:0x3")
        for j in range(4):
            a.e(f"v_add_f32_dpp v{vS+j}, v{vS+j+4}, v{vS+j+4} row_ror:8 row_mask:0xf bank_mask:0xc")
        for j in range(2):
            a.e(f"v_add_f32_dpp v{vS+j}, v{vS+j}, v{vS+j} row_half_mirror row_mask:0xf bank_mask:0x5")
        for j in range(2):
            a.e(f"v_add_f32_dpp v{vS+j}, v{vS+j+2}, v{vS+j+2} row_half_mirror row_mask:0xf bank_mask:0xa")
        a.e("s_nop 0")
        for j in range(2):
            a.e(f"v_add_f32_dpp v{vS+j}, v{vS+j}, v{vS+j} quad_perm:[1,0,3,2] {FULL}")
        a.e("s_nop 0")
        a.e(f"v_cndmask_b32 v{vT}, v{vS}, v{vS+1}, {sr(sPAR,2)}")
        a.e("s_nop 1")
        a.e(f"v_add_f32_dpp v{vT}, v{vT}, v{vT} quad_perm:[2,3,0,1] {FULL}")
        a.e(f"v_mul_f32 v{vT}, s{sC}, v{vT}")
        a.e("s_nop 1")
        a.e(f"v_max_f32_dpp v{vT+1}, v{vT}, v{vT} quad_perm:[1,0,3,2] {FULL}")
        a.e("s_nop 1")
        a.e(f"v_max_f32_dpp v{vT+1}, v{vT+1}, v{vT+1} row_ror:4 {FULL}")
        a.e("s_nop 1")
        a.e(f"v_max_f32_dpp v{vT+1}, v{vT+1}, v{vT+1} row_ror:8 {FULL}")
        a.e(f"v_max_f32 v{vT+1}, v{vT+1}, v{vM}")
        a.e(f"v_sub_f32 v{vAl}, v{vM}, v{vT+1}")
        a.e(f"v_sub_f32 v{vT}, v{vT}, v{vT+1}")
        a.e(f"v_exp_f32 v{vAl}, v{vAl}")
        a.e(f"v_exp_f32 v{vT}, v{vT}")
        a.e(f"v_mov_b32 v{vM}, v{vT+1}")
        a.e(f"v_cvt_pk_bf16_f32 v{vPlo}, v{vT}, 0")
        a.e(f"v_cvt_pk_bf16_f32 v{vPhi}, 0, v{vT}")
        a.e(f"v_fma_f32 v{vL}, v{vL}, v{vAl}, v{vT}")
        for k in range(8):
            a.e(f"v_mul_f32 v{vO+k}, v{vAl}, v{vO+k}")
        if opt.nocomp & 2: del a.lines[mark:]
        for j in range(8):
            a.wait_vm(f"t{t}n{8+j}")
            issue_upto(16*t + 8 + j + la_at(16*t + 8 + j))
            vr_ = slot_reg(t, 8 + j)
            for d in range(4 if not (opt.nocomp & 4) else 0):
                a.e(f"v_dot2c_f32_bf16_dpp v{vO+2*d}, v{vPlo}, v{vr_+d} row_newbcast:{pos(j)} {FULL}")
                a.e(f"v_dot2c_f32_bf16_dpp v{vO+2*d+1}, v{vPhi}, v{vr_+d} row_newbcast:{pos(j)} {FULL}")
        if opt.wo and opt.wot + 1 <= t <= opt.wot + 8:
            wo_perm(t - 1 - opt.wot)
    stamp(5)
    a.c("in-wave combine of the 4 lane rows")
    a.e(f"v_mov_b32 v{vT+2}, v{vM}")
    allred_rows(a, vT+2, vT, vT+1, "v_max_f32")
    a.e(f"v_sub_f32 v{vAl}, v{vM}, v{vT+2}")
    a.e(f"v_exp_f32 v{vAl}, v{vAl}")
    a.e(f"v_mov_b32 v{vM}, v{vT+2}")
    a.e(f"v_mul_f32 v{vL}, v{vAl}, v{vL}")
    for k in range(8):
        a.e(f"v_mul_f32 v{vO+k}, v{vAl}, v{vO+k}")
    a.e(f"v_add_f32_dpp v{vL}, v{vL}, v{vL} quad_perm:[1,0,3,2] {FULL}")
    a.e(f"s_lshl_b32 s{sT0}, s{sW}, 9")
    a.e(f"v_add_u32 v{vT+2}, s{sT0}, v{vA0}")
    a.e(f"v_add_f32_dpp v{vL}, v{vL}, v{vL} quad_perm:[2,3,0,1] {FULL}")
    reduce_scatter8(a, vO)
    a.e(f"ds_write_b64 v{vT+2}, {vr(vO,2)} offset:{LDS_OP}")
    a.e(f"v_add_f32_dpp v{vL}, v{vL}, v{vL} row_ror:4 {FULL}")
    a.e(f"s_lshl_b32 s{sT0}, s{sW}, 3")
    a.e(f"v_mov_b32 v{vT+2}, s{sT0}")
    a.e(f"v_add_f32_dpp v{vL}, v{vL}, v{vL} row_ror:8 {FULL}")
    allred_rows(a, vL, vT, vT+1, "v_add_f32")
    a.e(f"v_mul_f32 v{vL}, 0.5, v{vL}")
    a.e(f"ds_write_b64 v{vT+2}, {vr(vM,2)} offset:{LDS_ML}")
    for k in range(8):
        a.e(f"v_mov_b32 v{vS+k}, 0")
    a.e(f"v_lshrrev_b32 v{vT}, 3, v{vLane}")
    a.e(f"v_and_b32 v{vT+1}, 7, v{vLane}")
    a.e(f"v_lshlrev_b32 v{vT}, 3, v{vT}")
    a.e(f"v_lshl_add_u32 v{vT}, v{vT+1}, 6, v{vT}")
    a.e(f"v_mov_b32 v{vT+1}, 0")
    a.e("s_waitcnt lgkmcnt(0)")
    a.e("s_barrier")
    stamp(6)
    a.c("merge the 8 waves: this lane owns the dimension pair (16*c8 + 2r, +1)")
    vML, vOP = vKb, vVb
    for x in range(4):
        a.e(f"ds_read_b128 {vr(vML+4*x,4)}, v{vT+1} offset:{LDS_ML + 16*x}")
    for x in range(8):
        a.e(f"ds_read_b64 {vr(vOP+2*x,2)}, v{vT} offset:{LDS_OP + x*512}")
    a.e("s_waitcnt lgkmcnt(8)")
    a.e(f"v_max3_f32 v{vM}, v{vML}, v{vML+2}, v{vML+4}")
    a.e(f"v_max3_f32 v{vT+2}, v{vML+6}, v{vML+8}, v{vML+10}")
    a.e(f"v_max3_f32 v{vM}, v{vM}, v{vML+12}, v{vML+14}")
    a.e(f"v_max_f32 v{vM}, v{vM}, v{vT+2}")
    for x in range(8):
        a.e(f"v_sub_f32 v{vML+2*x}, v{vML+2*x}, v{vM}")
    for x in range(8):
        a.e(f"v_exp_f32 v{vML+2*x}, v{vML+2*x}")
    a.e(f"v_mul_f32 v{vL}, v{vML}, v{vML+1}")
    for x in range(1, 8):
        a.e(f"v_fma_f32 v{vL}, v{vML+2*x}, v{vML+2*x+1}, v{vL}")
    a.e("s_waitcnt lgkmcnt(0)")
    a.e(f"v_mul_f32 v{vO}, v{vML}, v{vOP}")
    a.e(f"v_mul_f32 v{vO+1}, v{vML}, v{vOP+1}")
    for x in range(1, 8):
        a.e(f"v_fma_f32 v{vO}, v{vML+2*x}, v{vOP+2*x}, v{vO}")
        a.e(f"v_fma_f32 v{vO+1}, v{vML+2*x}, v{vOP+2*x+1}, v{vO+1}")
    a.e(f"v_cvt_pk_bf16_f32 v{vPlo}, v{vO}, v{vO+1}")
    a.e(f"s_mul_i32 s{sT0}, s{sIDX}, {YROW}")
    a.e(f"s_add_u32 s{sT2}, s{sT0}, 2048")
    a.c("row group r = 2g + (i>>3) needs the pairs held by lanes (r, j') : broadcast inside half rows")
    for j in range(8):
        a.e(f"v_mov_b32_dpp v{vO+j}, v{vPlo} row_newbcast:{j} row_mask:0xf bank_mask:0x3")
    for j in range(8):
        a.e(f"v_mov_b32_dpp v{vO+j}, v{vPlo} row_newbcast:{8+j} row_mask:0xf bank_mask:0xc")
    a.c("projection: 64 columns of this wave, all 128 rows of the head (wo pre-permuted into row pairs)")
    for p in range(8):
        for d in range(4):
            r0 = vWQ + 8*p + d
            r1 = vWQ + 8*p + 4 + d
            a.e(f"v_dot2c_f32_bf16 v{vS+2*d}, v{vO+p}, v{r0}")
            a.e(f"v_dot2c_f32_bf16 v{vS+2*d+1}, v{vO+p}, v{r1}")
    a.e(f"v_and_b32 v{vT}, 7, v{vLane}")
    a.e(f"v_lshlrev_b32 v{vT}, 5, v{vT}")
    a.e(f"v_lshrrev_b32 v{vT+1}, 5, v{vLane}")
    a.e(f"v_lshl_add_u32 v{vT}, v{vT+1}, 4, v{vT}")
    a.e(f"s_lshl_b32 s{sT1}, s{sW}, 8")
    a.e(f"s_add_u32 s{sT0}, s{sT0}, s{sT1}")
    for k in range(4):
        a.e(f"v_permlane32_swap_b32 v{vS+k}, v{vS+4+k}")
    a.e("s_nop 1")
    for k in range(4):
        a.e(f"v_add_f32 v{vS+k}, v{vS+k}, v{vS+4+k}")
    a.e("s_nop 0")
    for k in range(4):
        a.e(f"v_add_f32_dpp v{vS+k}, v{vS+k}, v{vS+k} row_ror:8 {FULL}")
    for k in range(4):
        a.e(f"v_mov_b32 v{vS+4+k}, v{vS+k}")
    a.e("s_nop 1")
    for k in range(4):
        a.e(f"v_permlane16_swap_b32 v{vS+k}, v{vS+4+k}")
    a.e("s_nop 1")
    for k in range(4):
        a.e(f"v_add_f32 v{vS+k}, v{vS+k}, v{vS+4+k}")
    a.e(f"v_and_b32 v{vT+1}, 24, v{vLane}")
    a.e(f"v_cmp_eq_u32 vcc, 0, v{vT+1}")
    a.e(f"s_and_saveexec_b64 {sr(sEX,2)}, vcc")
    a.e(f"buffer_store_dwordx4 {vr(vS,4)}, v{vT}, {sr(sWS,4)}, s{sT0} offen sc1")
    a.e(f"s_cmp_lg_u32 s{sW}, 0")
    a.e("s_cbranch_scc1 L_no_ml")
    a.e("s_mov_b64 exec, 1")
    a.e(f"v_mov_b32 v{vT+1}, 0")
    a.e(f"buffer_store_dwordx2 {vr(vM,2)}, v{vT+1}, {sr(sWS,4)}, s{sT2} offen sc1")
    a.label("L_no_ml")
    a.e(f"s_mov_b64 exec, {sr(sEX,2)}")
    stamp(7)
    a.label("L_stream_done")
    if opt.stamps:
        stamp(8)
        a.e("s_waitcnt vmcnt(0)")
        stamp(9)
        dump_stamps(vT, vS, vLane, 10)
    a.e("s_endpgm")

    a.vmq = []
    a.raw(".p2align 6")
    a.label("L_aux")
    uX = 2
    uAcc = 18
    uT = 26
    uW = 40
    uZ = 104
    uML = 112
    uG, uG1, uB2, uOff, uH2, uNeg, uEp = 116, 117, 118, 119, 120, 121, 122
    if opt.pf:
        a.c("warm L2 with this kernel's code (instruction fetch misses then stop at L2)")
        a.e("s_getpc_b64 s[70:71]")
        a.label("L_pc")
        a.e(f"s_sub_u32 s70, s70, L_pc-{K1}")
        a.e("s_subb_u32 s71, s71, 0")
        a.e(f"v_lshlrev_b32 v26, 7, v{vLane}")
        a.e(f"s_mov_b32 s{sT0}, L_code_end-{K1}-4")
        for x in range(opt.pf):
            a.e(f"v_min_u32 v27, s{sT0}, v26")
            a.e(f"v_and_b32 v27, 0xfffffffc, v27")
            a.e(f"global_load_dword v{128+x}, v27, s[70:71]")
            a.e(f"v_add_u32 v26, 0x2000, v26")
    a.e("s_waitcnt lgkmcnt(0)")
    if opt.touch:
        a.c("pull this workgroup's share of the weights used later (wo, w1, w2) into L2 while HBM waits for q:")
        a.c("one dword per 128-byte line")
        if opt.tprio: a.e(f"s_setprio {opt.tprio}")
        a.e(f"s_lshl_b32 s{sT1}, s{sB}, 1")
        a.e(f"s_add_u32 s{sT1}, s{sT1}, s{sS}")
        a.e(f"v_lshlrev_b32 v{uT}, 7, v{vLane}")
        a.e(f"s_lshl_b32 s{sT0}, s{sH}, 17")
        a.e(f"s_lshl_b32 s{sT2}, s{sT1}, 14")
        a.e(f"s_add_u32 s{sT0}, s{sT0}, s{sT2}")
        srd(a, sWO, 12, sT0, "0x4000")
        a.e(f"s_mov_b32 s{sT2}, 0x2000")
        if opt.touch & 1:
            a.e(f"buffer_load_dword v{128}, v{uT}, {sr(sWO,4)}, 0 offen")
            a.e(f"buffer_load_dword v{129}, v{uT}, {sr(sWO,4)}, s{sT2} offen")
        if opt.touch & 2:
            a.c("w1: the 128-byte column block of units 64*(u>>1).. is shared by 8 workgroups: rows 64*r8 + lane")
            a.e(f"s_min_u32 s{sT3}, s{sU}, 55")
            a.e(f"s_lshr_b32 s{sT0}, s{sT3}, 1")
            a.e(f"s_lshl_b32 s{sT0}, s{sT0}, 7")
            srd(a, sW1, 16, sT0, "0x1c0000")
            a.e(f"s_sub_u32 s{sW1+2}, s{sW1+2}, s{sT0}")
            a.e(f"s_lshl_b32 s{sT2}, s{sT1}, 6")
            a.e(f"v_add_u32 v{uT+1}, s{sT2}, v{vLane}")
            a.e(f"v_mul_u32_u24 v{uT+1}, 3584, v{uT+1}")
            a.e(f"buffer_load_dword v{130}, v{uT+1}, {sr(sW1,4)}, 0 offen")
            a.c("w2: 32 rows of this slice are shared by the 4 batches: 8 KiB each")
            a.e(f"s_lshl_b32 s{sT0}, s{sT3}, 15")
            a.e(f"s_lshl_b32 s{sT2}, s{sB}, 13")
            a.e(f"s_add_u32 s{sT0}, s{sT0}, s{sT2}")
            srd(a, sW2, 20, sT0, "0x2000")
            a.e(f"buffer_load_dword v{131}, v{uT}, {sr(sW2,4)}, 0 offen")
        if opt.tprio: a.e("s_setprio 0")
    a.e("s_load_dwordx4 s[8:11], s[0:1], 72")
    a.e("s_load_dwordx4 s[12:15], s[0:1], 88")
    a.e("s_waitcnt lgkmcnt(0)")
    srd(a, sX, 4, None, "0x1000")
    srd(a, sWS, 22, None, f"0x{WS_SIZE:x}")
    if opt.cgmap:
        a.c("column group: workgroups that share cache lines of the partial rows sit on one XCD when ids are dealt round-robin")
        a.e(f"s_and_b32 s{sCG}, s{sH}, 7")
        a.e(f"s_lshl_b32 s{sCG}, s{sCG}, 3")
        a.e(f"s_lshr_b32 s{sT0}, s{sH}, 3")
        a.e(f"s_lshl_b32 s{sT0}, s{sT0}, 1")
        a.e(f"s_add_u32 s{sCG}, s{sCG}, s{sT0}")
        a.e(f"s_add_u32 s{sCG}, s{sCG}, s{sS}")
    else:
        a.e(f"s_mov_b32 s{sCG}, s{sU}")
    a.c("epoch of this launch = (word left in the workspace) + 1: tells this launch's hand-offs from older ones")
    def epoch_addr():
        if opt.coop:
            a.e(f"s_mov_b32 s{sT0}, {WS_EPOCH}")
        else:
            a.e(f"s_lshl_b32 s{sT0}, s{sB}, 7")
            a.e(f"s_add_u32 s{sT0}, s{sT0}, {WS_EPOCH}")
    a.e(f"v_mov_b32 v{uT+4}, 0")
    epoch_addr()
    a.e(f"buffer_load_dword v{uEp}, v{uT+4}, {sr(sWS,4)}, s{sT0} offen sc1")
    a.e(f"v_mov_b32 v26, {LDS_FLAG}")
    a.e(f"v_mov_b32 v27, 0")
    a.e(f"ds_write_b32 v26, v27")
    if opt.coop:
        a.e(f"v_lshlrev_b32 v{uT+2}, 2, v{vLane}")
        a.e(f"s_lshl_b32 s{sT0}, s{sH}, 11")
        a.e(f"s_add_u32 s{sT0}, s{sT0}, {WS_QX}")
        a.e(f"s_lshl_b32 s{sT1}, s{sB}, 1")
        a.e(f"s_add_u32 s{sT1}, s{sT1}, s{sS}")
        a.e(f"s_lshl_b32 s{sT1}, s{sT1}, 8")
        a.e(f"s_add_u32 s{sT1}, s{sT1}, s{sT0}")
        a.e(f"v_lshrrev_b32 v{uT+5}, 3, v{vLane}")
        a.e(f"v_lshlrev_b32 v{uT+5}, 8, v{uT+5}")
        a.e(f"v_and_b32 v{uT+6}, 7, v{vLane}")
        a.e(f"v_lshl_add_u32 v{uT+5}, v{uT+6}, 3, v{uT+5}")
        a.e(f"s_lshl_b32 s{sT2}, s{sB}, 6")
        a.e(f"s_add_u32 s{sT2}, s{sT2}, s{sT0}")
        a.e("s_waitcnt vmcnt(0) lgkmcnt(0)")
        a.e(f"v_add_u32 v{uEp}, 1, v{uEp}")
        if opt.prio: a.e(f"s_setprio {opt.prio}")
        a.e("s_barrier")
        qstamp(1)
        a.c("sum the 8 partial q pieces (lane = batch*16 + column), publish them as {bf16 pair, epoch} granules")
        for x in range(8):
            a.e(f"ds_read_b32 v{uW+x}, v{uT+2} offset:{LDS_QP + x*256}")
        a.e("s_waitcnt lgkmcnt(0)")
        for x in (0, 2, 4, 6):
            a.e(f"v_add_f32 v{uW+x}, v{uW+x}, v{uW+x+1}")
        a.e(f"v_add_f32 v{uW}, v{uW}, v{uW+2}")
        a.e(f"v_add_f32 v{uW+4}, v{uW+4}, v{uW+6}")
        a.e(f"v_add_f32 v{uW}, v{uW}, v{uW+4}")
        a.e(f"v_lshlrev_b32 v{uT+3}, 2, v{vLane}")
        a.e("s_nop 0")
        a.e(f"v_mov_b32_dpp v{uW+1}, v{uW} quad_perm:[1,0,3,2] {FULL}")
        a.e(f"v_mov_b32 v{uW+3}, v{uEp}")
        a.e(f"v_cvt_pk_bf16_f32 v{uW+2}, v{uW}, v{uW+1}")
        a.e(f"s_mov_b32 s{sEX}, 0x55555555")
        a.e(f"s_mov_b32 s{sEX+1}, 0x55555555")
        a.e(f"s_mov_b64 exec, {sr(sEX,2)}")
        a.e(f"buffer_store_dwordx2 {vr(uW+2,2)}, v{uT+3}, {sr(sWS,4)}, s{sT1} offen sc1")
        a.e("s_mov_b64 exec, -1")
        qstamp(2)
        a.c("collect the 64 column pairs of this batch from the 8 workgroups of the head")
        a.e(f"s_mov_b32 s{sCNT}, {opt.spin}")
        a.label("L_q_poll")
        a.e(f"buffer_load_dwordx2 {vr(uW+4,2)}, v{uT+5}, {sr(sWS,4)}, s{sT2} offen sc1")
        a.e("s_waitcnt vmcnt(0)")
        if opt.qdbg:
            a.e(f"s_cmp_lg_u32 s{sCNT}, {opt.spin}")
            a.e("s_cbranch_scc1 L_q_nf")
            qstamp(3)
            a.label("L_q_nf")
        a.e(f"v_cmp_ne_u32 vcc, v{uW+5}, v{uEp}")
        a.e("s_nop 4")
        a.e("s_cbranch_vccz L_q_ok")
        a.e(f"s_sub_u32 s{sCNT}, s{sCNT}, 1")
        a.e(f"s_cmp_lg_u32 s{sCNT}, 0")
        a.e("s_cbranch_scc1 L_q_poll")
        a.label("L_q_ok")
        qstamp(4)
        a.e(f"ds_write_b32 v{uT+2}, v{uW+4} offset:{LDS_QF}")
        a.e("s_waitcnt lgkmcnt(0)")
        a.e("s_barrier")
    else:
        a.e("s_waitcnt lgkmcnt(0)")
        a.e("s_barrier")
        a.e("s_waitcnt vmcnt(0)")
        a.e(f"v_add_u32 v{uEp}, 1, v{uEp}")
    qstamp(5)
    if opt.prio: a.e("s_setprio 0")
    in_aux[0] = True
    stamp(1)
    if not opt.aux:
        a.e("s_barrier")
        if opt.stamps:
            srd(a, sWS, 22, None, f"0x{WS_SIZE:x}")
            for i in range(2, 10): stamp(i)
            dump_stamps(26, 28, vLane, 10)
        a.e("s_endpgm")
    a.c("clear this workgroup's y row and m/l with the 'not written' pattern")
    a.e(f"v_mov_b32 v{uT}, -1")
    a.e(f"v_mov_b32 v{uT+1}, -1")
    a.e(f"v_mov_b32 v{uT+2}, -1")
    a.e(f"v_mov_b32 v{uT+3}, -1")
    a.e(f"v_lshlrev_b32 v{uOff}, 4, v{vLane}")
    a.e(f"s_mul_i32 s{sT0}, s{sIDX}, {YROW}")
    if opt.axoff & 4: a.e(f"s_mov_b32 s{sWS+2}, 0")
    a.e(f"buffer_store_dwordx4 {vr(uT,4)}, v{uOff}, {sr(sWS,4)}, s{sT0} offen sc1")
    a.e(f"buffer_store_dwordx4 {vr(uT,4)}, v{uOff}, {sr(sWS,4)}, s{sT0} offen offset:1024 sc1")
    a.e(f"v_cmp_gt_u32 vcc, 8, v{vLane}")
    a.e(f"s_and_saveexec_b64 {sr(sEX,2)}, vcc")
    a.e(f"buffer_store_dwordx4 {vr(uT,4)}, v{uOff}, {sr(sWS,4)}, s{sT0} offen offset:2048 sc1")
    a.e(f"s_mov_b64 exec, {sr(sEX,2)}")
    a.c("FFN stage 1: 32 hidden units (8 per lane group c = lane&3), rows 32rr..32rr+31 with rr = lane>>2")
    a.e(f"s_min_u32 s{sT3}, s{sU}, 55")
    a.e(f"s_lshl_b32 s{sT0}, s{sT3}, 6")
    srd(a, sW1, 16, sT0, "0x1c0000")
    a.e(f"s_sub_u32 s{sW1+2}, s{sW1+2}, s{sT0}")
    a.e(f"s_lshl_b32 s{sT0}, s{sT3}, 15")
    srd(a, sW2, 20, sT0, "0x8000")
    a.e(f"s_cmp_ge_u32 s{sU}, 56")
    a.e(f"s_cselect_b32 s{sW1+2}, 0, s{sW1+2}")
    a.e(f"s_cselect_b32 s{sW2+2}, 0, s{sW2+2}")
    if opt.axoff & 1: a.e(f"s_mov_b32 s{sW1+2}, 0")
    if opt.axoff & 2: a.e(f"s_mov_b32 s{sW2+2}, 0")
    a.e(f"v_lshrrev_b32 v{uT}, 2, v{vLane}")
    a.e(f"v_lshlrev_b32 v{uT+1}, 6, v{uT}")
    a.e(f"s_lshl_b32 s{sT1}, s{sB}, 10")
    for x in range(4):
        a.vmem(f"buffer_load_dwordx4 {vr(uX+4*x,4)}, v{uT+1}, {sr(sX,4)}, s{sT1} offen offset:{16*x}", "xf")
    a.e(f"s_mov_b32 s{sT0}, {32*3584}")
    a.e(f"v_mul_lo_u32 v{uT+2}, s{sT0}, v{uT}")
    a.e(f"v_and_b32 v{uT+3}, 3, v{vLane}")
    a.e(f"v_lshl_add_u32 v{uT+2}, v{uT+3}, 4, v{uT+2}")
    for k in range(8):
        a.e(f"v_mov_b32 v{uAcc+k}, 0")
    WIN = opt.auxwin
    def ffn_stream(nload, mk_load, consume):
        issued_ = 0
        for p in range(nload // 2):
            while issued_ < min(nload, 2*p + 2 + WIN):
                a.vmem(mk_load(issued_), f"aux{issued_}")
                issued_ += 1
            a.wait_vm(f"aux{2*p+1}")
            consume(p)
    def w1_load(j):
        a.e(f"s_mov_b32 s{sT2}, {j*3584}")
        return f"buffer_load_dwordx4 {vr(uW+4*(j&15),4)}, v{uT+2}, {sr(sW1,4)}, s{sT2} offen{wpol}"
    def w1_use(p):
        j = (2*p) & 15
        for d in range(4):
            r0 = uW + 4*j + d; r1 = r0 + 4
            a.e(f"v_perm_b32 v{uT+4}, v{r1}, v{r0}, s{sPLO}")
            a.e(f"v_perm_b32 v{uT+5}, v{r1}, v{r0}, s{sPHI}")
            a.e(f"v_dot2c_f32_bf16 v{uAcc+2*d}, v{uT+4}, v{uX+p}")
            a.e(f"v_dot2c_f32_bf16 v{uAcc+2*d+1}, v{uT+5}, v{uX+p}")
    assert WIN + 2 <= 16
    ffn_stream(32, w1_load, w1_use)
    a.e("s_nop 2")
    reduce_scatter8(a, uAcc)
    a.e("s_nop 1")
    for k in range(2):
        a.e(f"v_add_f32_dpp v{uAcc+k}, v{uAcc+k}, v{uAcc+k} row_ror:8 {FULL}")
    a.e("s_nop 0")
    for k in range(2):
        a.e(f"v_add_f32_dpp v{uAcc+k}, v{uAcc+k}, v{uAcc+k} row_ror:4 {FULL}")
    a.c("lane (g, c): units 8c+2g, 8c+2g+1.  h = bf16(bf16(sum) + b1); h2 = bf16(relu(h)^2)")
    a.e(f"s_lshl_b32 s{sT0}, s{sT3}, 6")
    srd(a, sW1, 18, sT0, "64")
    a.e(f"v_lshrrev_b32 v{uT}, 4, v{vLane}")
    a.e(f"v_lshlrev_b32 v{uT}, 2, v{uT}")
    a.e(f"v_and_b32 v{uT+1}, 3, v{vLane}")
    a.e(f"v_lshl_add_u32 v{uT}, v{uT+1}, 4, v{uT}")
    a.vmem(f"buffer_load_dword v{uT+1}, v{uT}, {sr(sW1,4)}, 0 offen", "b1")
    a.e(f"v_cvt_pk_bf16_f32 v{uT+2}, v{uAcc}, v{uAcc+1}")
    a.e(f"v_lshlrev_b32 v{uAcc}, 16, v{uT+2}")
    a.e(f"v_and_b32 v{uAcc+1}, 0xffff0000, v{uT+2}")
    a.wait_vm("b1")
    a.e(f"v_lshlrev_b32 v{uT+2}, 16, v{uT+1}")
    a.e(f"v_and_b32 v{uT+3}, 0xffff0000, v{uT+1}")
    a.e(f"v_add_f32 v{uAcc}, v{uAcc}, v{uT+2}")
    a.e(f"v_add_f32 v{uAcc+1}, v{uAcc+1}, v{uT+3}")
    a.e(f"v_cvt_pk_bf16_f32 v{uT+2}, v{uAcc}, v{uAcc+1}")
    a.e(f"v_lshlrev_b32 v{uAcc}, 16, v{uT+2}")
    a.e(f"v_and_b32 v{uAcc+1}, 0xffff0000, v{uT+2}")
    a.e(f"v_max_f32 v{uAcc}, 0, v{uAcc}")
    a.e(f"v_max_f32 v{uAcc+1}, 0, v{uAcc+1}")
    a.e(f"v_mul_f32 v{uAcc}, v{uAcc}, v{uAcc}")
    a.e(f"v_mul_f32 v{uAcc+1}, v{uAcc+1}, v{uAcc+1}")
    a.e(f"v_cvt_pk_bf16_f32 v{uH2}, v{uAcc}, v{uAcc+1}")
    a.c("FFN stage 2: rows 32u..32u+31 of w2, lane = 8 columns")
    a.e(f"v_lshlrev_b32 v{uT+2}, 4, v{vLane}")
    for k in range(8):
        a.e(f"v_mov_b32 v{uAcc+k}, 0")
    def w2_load(j):
        a.e(f"s_mov_b32 s{sT2}, {(j>>2)*4096}")
        return f"buffer_load_dwordx4 {vr(uW+4*(j&15),4)}, v{uT+2}, {sr(sW2,4)}, s{sT2} offen offset:{(j&3)*1024}{wpol}"
    def w2_use(p):
        c_, g_ = p >> 2, p & 3
        a.e(f"v_readlane_b32 s{sT0}, v{uH2}, {16*g_ + c_}")
        j = (2*p) & 15
        for d in range(4):
            r0 = uW + 4*j + d; r1 = r0 + 4
            a.e(f"v_perm_b32 v{uT+4}, v{r1}, v{r0}, s{sPLO}")
            a.e(f"v_perm_b32 v{uT+5}, v{r1}, v{r0}, s{sPHI}")
            a.e(f"v_dot2c_f32_bf16 v{uAcc+2*d}, s{sT0}, v{uT+4}")
            a.e(f"v_dot2c_f32_bf16 v{uAcc+2*d+1}, s{sT0}, v{uT+5}")
    ffn_stream(32, w2_load, w2_use)
    a.e(f"s_lshl_b32 s{sT0}, s{sIDX}, 11")
    a.e(f"s_add_u32 s{sT1}, s{sT0}, {WS_Z}")
    a.e("s_nop 1")
    a.c("FFN partial row, stored as [half][lane][4]; once it and the cleared y row are acknowledged, raise the ready flag")
    a.e(f"buffer_store_dwordx4 {vr(uAcc,4)}, v{uOff}, {sr(sWS,4)}, s{sT1} offen sc1")
    a.e(f"buffer_store_dwordx4 {vr(uAcc+4,4)}, v{uOff}, {sr(sWS,4)}, s{sT1} offen offset:1024 sc1")
    a.e(f"s_lshl_b32 s{sT0}, s{sIDX}, 7")
    a.e(f"s_add_u32 s{sT0}, s{sT0}, {WS_FLAG}")
    a.e(f"v_mov_b32 v{uT+4}, 0")
    a.e("s_waitcnt vmcnt(0)")
    a.e(f"v_cmp_eq_u32 vcc, 0, v{vLane}")
    a.e(f"s_and_saveexec_b64 {sr(sEX,2)}, vcc")
    a.e(f"buffer_store_dword v{uEp}, v{uT+4}, {sr(sWS,4)}, s{sT0} offen sc1")
    a.e(f"s_mov_b64 exec, {sr(sEX,2)}")
    if opt.axoff & 4: a.e(f"s_mov_b32 s{sWS+2}, 0x{WS_SIZE:x}")
    stamp(2)
    a.c("gate: g = bf16(sigmoid(bf16(sum bf16(x*w))))")
    a.e(f"v_lshlrev_b32 v{uT}, 4, v{vLane}")
    srd(a, sW1, 10, None, "1024")
    a.e(f"s_lshl_b32 s{sT1}, s{sB}, 10")
    a.e(f"buffer_load_dwordx4 {vr(uW,4)}, v{uT}, {sr(sX,4)}, s{sT1} offen")
    a.e(f"buffer_load_dwordx4 {vr(uW+4,4)}, v{uT}, {sr(sW1,4)}, 0 offen")
    a.c("b2 of this lane's output column: column = 2g + (i >= 8)")
    a.e(f"s_lshl_b32 s{sT0}, s{sCG}, 4")
    srd(a, sW2, 8, sT0, "16")
    a.e(f"v_lshrrev_b32 v{uT+1}, 4, v{vLane}")
    a.e(f"v_lshlrev_b32 v{uT+1}, 2, v{uT+1}")
    a.e(f"v_bfe_u32 v{uT+2}, v{vLane}, 3, 1")
    a.e(f"v_lshl_add_u32 v{uNeg}, v{uT+2}, 1, v{uT+1}")
    a.e(f"buffer_load_ushort v{uB2}, v{uNeg}, {sr(sW2,4)}, 0 offen")
    a.e("s_waitcnt vmcnt(1)")
    a.e(f"v_mov_b32 v{uG}, 0")
    for d in range(4):
        a.e(f"v_lshlrev_b32 v{uT}, 16, v{uW+d}")
        a.e(f"v_and_b32 v{uT+1}, 0xffff0000, v{uW+d}")
        a.e(f"v_lshlrev_b32 v{uT+2}, 16, v{uW+4+d}")
        a.e(f"v_and_b32 v{uT+3}, 0xffff0000, v{uW+4+d}")
        a.e(f"v_mul_f32 v{uT}, v{uT}, v{uT+2}")
        a.e(f"v_mul_f32 v{uT+1}, v{uT+1}, v{uT+3}")
        a.e(f"v_cvt_pk_bf16_f32 v{uT}, v{uT}, v{uT+1}")
        a.e(f"v_lshlrev_b32 v{uT+1}, 16, v{uT}")
        a.e(f"v_and_b32 v{uT}, 0xffff0000, v{uT}")
        a.e(f"v_add_f32 v{uG}, v{uG}, v{uT+1}")
        a.e(f"v_add_f32 v{uG}, v{uG}, v{uT}")
    def dpp_allred16(reg):
        for m in ("quad_perm:[1,0,3,2]", "quad_perm:[2,3,0,1]", "row_ror:4", "row_ror:8"):
            a.e("s_nop 1")
            a.e(f"v_add_f32_dpp v{reg}, v{reg}, v{reg} {m} {FULL}")
    dpp_allred16(uG)
    allred_rows(a, uG, uT, uT+1, "v_add_f32")
    def rbf(reg):
        a.e(f"v_cvt_pk_bf16_f32 v{reg}, v{reg}, v{reg}")
        a.e(f"v_lshlrev_b32 v{reg}, 16, v{reg}")
    rbf(uG)
    a.e(f"v_mul_f32 v{uG}, 0xbfb8aa3b, v{uG}")
    a.e(f"v_exp_f32 v{uG}, v{uG}")
    a.e("s_nop 0")
    a.e(f"v_add_f32 v{uG}, 1.0, v{uG}")
    a.e(f"v_rcp_f32 v{uG}, v{uG}")
    a.e("s_nop 0")
    rbf(uG)
    a.e(f"v_sub_f32 v{uG1}, 1.0, v{uG}")
    rbf(uG1)
    a.c("idle until the streaming waves are half way")
    a.e(f"s_mov_b32 s{sCNT}, {opt.spin}")
    a.e(f"v_mov_b32 v{uT+4}, {LDS_FLAG}")
    a.label("L_flag_poll")
    a.e(f"ds_read_b32 v{uT}, v{uT+4}")
    a.e("s_waitcnt lgkmcnt(0)")
    a.e(f"v_readfirstlane_b32 s{sT0}, v{uT}")
    a.e(f"s_cmp_eq_u32 s{sT0}, 1")
    a.e("s_cbranch_scc1 L_flag_ok")
    a.e("s_sleep 64")
    a.e(f"s_sub_u32 s{sCNT}, s{sCNT}, 1")
    a.e(f"s_cmp_lg_u32 s{sCNT}, 0")
    a.e("s_cbranch_scc1 L_flag_poll")
    a.label("L_flag_ok")
    a.c("wait for the ready flags of the 64 workgroups of this batch (lane = workgroup)")
    a.e(f"s_mov_b32 s{sCNT}, {opt.spin}")
    a.e(f"s_lshl_b32 s{sT1}, s{sB}, 13")
    a.e(f"s_add_u32 s{sT1}, s{sT1}, {WS_FLAG}")
    a.e(f"v_lshlrev_b32 v{uT+4}, 7, v{vLane}")
    a.label("L_rdy_poll")
    a.e(f"buffer_load_dword v{uT}, v{uT+4}, {sr(sWS,4)}, s{sT1} offen sc1")
    a.e("s_waitcnt vmcnt(0)")
    a.e(f"v_cmp_ne_u32 vcc, v{uT}, v{uEp}")
    a.e("s_nop 4")
    a.e("s_cbranch_vccz L_rdy_ok")
    a.e("s_sleep 32")
    a.e(f"s_sub_u32 s{sCNT}, s{sCNT}, 1")
    a.e(f"s_cmp_lg_u32 s{sCNT}, 0")
    a.e("s_cbranch_scc1 L_rdy_poll")
    a.label("L_rdy_ok")
    def reduce64_8(base):
        reduce_scatter8(a, base)
        a.e("s_nop 1")
        a.e(f"v_add_f32_dpp v{base}, v{base}, v{base} row_ror:8 row_mask:0xf bank_mask:0x3")
        a.e(f"v_add_f32_dpp v{base}, v{base+1}, v{base+1} row_ror:8 row_mask:0xf bank_mask:0xc")
        for m in ("row_half_mirror", "quad_perm:[1,0,3,2]", "quad_perm:[2,3,0,1]"):
            a.e("s_nop 1")
            a.e(f"v_add_f32_dpp v{base}, v{base}, v{base} {m} {FULL}")
    def poll(label, srd_, regs, loads, sleep):
        a.e(f"s_mov_b32 s{sCNT}, {1 if opt.axoff & 8 else opt.spin}")
        a.label(label)
        for l in loads:
            a.e(l)
        a.e("s_waitcnt vmcnt(0)")
        a.e(f"v_max3_u32 v{uT}, v{regs[0]}, v{regs[1]}, v{regs[2]}")
        rest = regs[3:]
        while rest:
            if len(rest) >= 2:
                a.e(f"v_max3_u32 v{uT}, v{uT}, v{rest[0]}, v{rest[1]}"); rest = rest[2:]
            else:
                a.e(f"v_max_u32 v{uT}, v{uT}, v{rest[0]}"); rest = rest[1:]
        a.e(f"v_cmp_eq_u32 vcc, -1, v{uT}")
        a.e("s_nop 4")
        a.e(f"s_cbranch_vccz {label}_ok")
        if sleep: a.e(f"s_sleep {sleep}")
        a.e(f"s_sub_u32 s{sCNT}, s{sCNT}, 1")
        a.e(f"s_cmp_lg_u32 s{sCNT}, 0")
        a.e(f"s_cbranch_scc1 {label}")
        a.label(label + "_ok")
    a.c("gather the FFN partial rows of this batch: lane = row, 8 columns of group u")
    a.e(f"s_lshl_b32 s{sT0}, s{sB}, 17")
    a.e(f"s_lshl_b32 s{sT1}, s{sCG}, 4")
    a.e(f"s_add_u32 s{sT2}, s{sT0}, s{sT1}")
    a.e(f"s_add_u32 s{sT2}, s{sT2}, {WS_Z}")
    srd(a, sW1, 22, sT2, f"{56*2048}")
    a.e(f"s_sub_u32 s{sW1+2}, s{sW1+2}, s{sT1}")
    a.e(f"s_mul_i32 s{sT0}, s{sB}, {64*YROW}")
    srd(a, sW2, 22, sT0, f"{64*YROW}")
    a.e(f"v_lshlrev_b32 v{uOff}, 11, v{vLane}")
    a.e(f"buffer_load_dwordx4 {vr(uZ,4)}, v{uOff}, {sr(sW1,4)}, 0 offen sc1")
    a.e(f"buffer_load_dwordx4 {vr(uZ+4,4)}, v{uOff}, {sr(sW1,4)}, 0 offen offset:1024 sc1")
    a.e("s_waitcnt vmcnt(0)")
    reduce64_8(uZ)
    rbf(uZ)
    a.e(f"v_lshlrev_b32 v{uB2}, 16, v{uB2}")
    a.e(f"v_add_f32 v{uZ}, v{uZ}, v{uB2}")
    rbf(uZ)
    a.e(f"v_mul_f32 v{uG1}, v{uG1}, v{uZ}")
    rbf(uG1)
    a.e(f"s_lshl_b32 s{sT0}, s{sB}, 10")
    a.e(f"s_lshl_b32 s{sT1}, s{sCG}, 4")
    a.e(f"s_add_u32 s{sT0}, s{sT0}, s{sT1}")
    srd(a, sOUT, 12, sT0, "16")
    a.e(f"s_mov_b32 s{sT0}, {YROW}")
    a.e(f"v_mul_lo_u32 v{uT+6}, s{sT0}, v{vLane}")
    a.e(f"s_lshl_b32 s{sT3}, s{sCG}, 5")
    stamp(3)
    a.e("s_barrier")
    stamp(4)
    a.c("wait for the m/l pairs of this batch (4 lines), then gather the attention partial rows")
    yv = uW
    if opt.mlpoll:
        poll("L_ml_poll", sW2, [yv+8, yv+9, yv+9],
             [f"buffer_load_dwordx2 {vr(yv+8,2)}, v{uT+6}, {sr(sW2,4)}, 0 offen offset:2048 sc1"], opt.ysleep)
    a.c("lanes whose row has arrived drop out of the poll; poll fast only when few rows are missing")
    a.e(f"s_mov_b32 s{sCNT}, {opt.spin}")
    a.label("L_y_poll")
    a.e(f"buffer_load_dwordx4 {vr(yv,4)}, v{uT+6}, {sr(sW2,4)}, s{sT3} offen sc1")
    a.e(f"buffer_load_dwordx4 {vr(yv+4,4)}, v{uT+6}, {sr(sW2,4)}, s{sT3} offen offset:16 sc1")
    a.e(f"buffer_load_dwordx2 {vr(yv+8,2)}, v{uT+6}, {sr(sW2,4)}, 0 offen offset:2048 sc1")
    a.e("s_waitcnt vmcnt(0)")
    a.e(f"v_max3_u32 v{uT}, v{yv}, v{yv+1}, v{yv+2}")
    a.e(f"v_max3_u32 v{uT+1}, v{yv+3}, v{yv+4}, v{yv+5}")
    a.e(f"v_max3_u32 v{uT}, v{uT}, v{yv+6}, v{yv+7}")
    a.e(f"v_max3_u32 v{uT+1}, v{uT+1}, v{yv+8}, v{yv+9}")
    a.e(f"v_max_u32 v{uT}, v{uT}, v{uT+1}")
    a.e(f"v_cmp_eq_u32 vcc, -1, v{uT}")
    a.e("s_nop 1")
    a.e("s_and_b64 exec, exec, vcc")
    a.e("s_cbranch_execz L_y_poll_ok")
    a.e(f"s_bcnt1_i32_b64 s{sT0}, exec")
    a.e(f"s_cmp_le_u32 s{sT0}, {opt.yfast}")
    a.e("s_cbranch_scc1 L_y_fast")
    a.e(f"s_sleep {opt.yslow}")
    a.label("L_y_fast")
    if opt.ysleep: a.e(f"s_sleep {opt.ysleep}")
    a.e(f"s_sub_u32 s{sCNT}, s{sCNT}, 1")
    a.e(f"s_cmp_lg_u32 s{sCNT}, 0")
    a.e("s_cbranch_scc1 L_y_poll")
    a.label("L_y_poll_ok")
    a.e("s_mov_b64 exec, -1")
    stamp(5)
    m_, l_ = yv+8, yv+9
    a.e(f"v_mov_b32_dpp v{uT}, v{m_} quad_perm:[1,0,3,2] {FULL}")
    a.e(f"v_mov_b32_dpp v{uT+1}, v{l_} quad_perm:[1,0,3,2] {FULL}")
    a.e(f"v_max_f32 v{uT+2}, v{m_}, v{uT}")
    a.e(f"v_sub_f32 v{uT+3}, v{m_}, v{uT+2}")
    a.e(f"v_sub_f32 v{uT}, v{uT}, v{uT+2}")
    a.e(f"v_exp_f32 v{uT+3}, v{uT+3}")
    a.e(f"v_exp_f32 v{uT}, v{uT}")
    a.e("s_nop 0")
    a.e(f"v_mul_f32 v{uT+2}, v{uT+3}, v{l_}")
    a.e(f"v_fma_f32 v{uT+2}, v{uT}, v{uT+1}, v{uT+2}")
    a.e(f"v_rcp_f32 v{uT+2}, v{uT+2}")
    a.e("s_nop 0")
    a.e(f"v_mul_f32 v{uT+2}, v{uT+2}, v{uT+3}")
    for k in range(8):
        a.e(f"v_mul_f32 v{yv+k}, v{uT+2}, v{yv+k}")
    a.e("s_nop 1")
    reduce64_8(yv)
    rbf(yv)
    a.e(f"v_mul_f32 v{yv}, v{uG}, v{yv}")
    rbf(yv)
    a.e(f"v_add_f32 v{yv}, v{yv}, v{uG1}")
    a.e(f"v_cvt_pk_bf16_f32 v{yv}, v{yv}, v{yv}")
    a.e(f"v_and_b32 v{uT}, 7, v{vLane}")
    a.e(f"v_cmp_eq_u32 vcc, 0, v{uT}")
    a.e(f"s_and_saveexec_b64 {sr(sEX,2)}, vcc")
    a.e(f"buffer_store_short v{yv}, v{uNeg}, {sr(sOUT,4)}, 0 offen")
    a.c("every workgroup this result depends on has read the epoch word: leave the new value for the next launch")
    a.e(f"s_cmp_lg_u32 s{sIDX if opt.coop else sU}, 0")
    a.e("s_cbranch_scc1 L_no_epoch")
    epoch_addr()
    a.e(f"v_mov_b32 v{uT+4}, 0")
    a.e(f"buffer_store_dword v{uEp}, v{uT+4}, {sr(sWS,4)}, s{sT0} offen sc1")
    a.label("L_no_epoch")
    if opt.stamps:
        a.e(f"s_mov_b64 exec, {sr(sEX,2)}")
        stamp(6)
        a.e("s_waitcnt vmcnt(0)")
        for i in (7, 8, 9): stamp(i)
        dump_stamps(uT, uT+2, vLane, 10)
    a.label("L_end")
    a.e("s_endpgm")
    a.label("L_code_end")

    out = HEADER
    out += f"; @launch grid=(256,1,1) block=(576,1,1) lds={LDS_SIZE}\n"
    out += '.amdgcn_target "amdgcn-amd-amdhsa--gfx950"\n.text\n' + a.text()
    out += f""".section .rodata,"a"
.p2align 6
.amdhsa_kernel {K1}
  .amdhsa_next_free_vgpr {NV}
  .amdhsa_next_free_sgpr 102
  .amdhsa_accum_offset {NV}
  .amdhsa_group_segment_fixed_size 0
  .amdhsa_kernarg_size 112
  .amdhsa_user_sgpr_count 2
  .amdhsa_user_sgpr_kernarg_segment_ptr 1
  .amdhsa_system_sgpr_workgroup_id_x 1
  .amdhsa_float_denorm_mode_32 3
.end_amdhsa_kernel
"""
    return out

def main():
    ap = argparse.ArgumentParser()
    ap.add_argument("-o", default="-")
    ap.add_argument("--policy", default="nt")
    ap.add_argument("--wpolicy", default="")
    ap.add_argument("--stamps", action="store_true")
    ap.add_argument("--la", type=float, default=3)
    ap.add_argument("--p0", type=int, default=16)
    ap.add_argument("--rot", type=int, default=1)
    ap.add_argument("--wo", type=int, default=1)
    ap.add_argument("--q", type=int, default=1)
    ap.add_argument("--aux", type=int, default=1)
    ap.add_argument("--nocomp", type=int, default=0)
    ap.add_argument("--map", default="hs")
    ap.add_argument("--pa", type=int, default=4)
    ap.add_argument("--pb", type=int, default=16)
    ap.add_argument("--ilv", type=int, default=2)
    ap.add_argument("--axoff", type=int, default=0)
    ap.add_argument("--pf", type=int, default=0)
    ap.add_argument("--qdbg", type=int, default=0)
    ap.add_argument("--prio", type=int, default=0)
    ap.add_argument("--coop", type=int, default=0)
    ap.add_argument("--ext", type=int, default=0)
    ap.add_argument("--wot", type=int, default=0)
    ap.add_argument("--yfast", type=int, default=8)
    ap.add_argument("--yslow", type=int, default=24)
    ap.add_argument("--lasched", default="")
    ap.add_argument("--pace", type=int, default=0)
    ap.add_argument("--cgmap", type=int, default=1)
    ap.add_argument("--touch", type=int, default=0)
    ap.add_argument("--tprio", type=int, default=3)
    ap.add_argument("--preext", type=int, default=0)
    ap.add_argument("--auxwin", type=int, default=2)
    ap.add_argument("--spin", type=int, default=200000)
    ap.add_argument("--ysleep", type=int, default=1)
    ap.add_argument("--ztile", type=int, default=8)
    ap.add_argument("--mlpoll", type=int, default=0)
    opt = ap.parse_args()
    out = gen(opt)
    if opt.o == "-": sys.stdout.write(out)
    else: open(opt.o, "w").write(out)

if __name__ == "__main__":
    main()
```

```python
import sys, argparse, struct

NAME = "gated_mix__mha_block_cached__dense_activation_squared_relu__decode"
HEADER = """; Kernarg layout (112 bytes, ptrs only, base s[0:1]):
"""

class Asm:
    def __init__(self):
        self.lines = []
        self.vmq = []
        self.done = set()
    def e(self, s): self.lines.append("    " + s)
    def c(self, s): self.lines.append("    ; " + s)
    def label(self, l): self.lines.append(l + ":")
    def raw(self, s): self.lines.append(s)
    def vmem(self, s, tag):
        self.e(s); self.vmq.append(tag)
    def wait_vm(self, tag):
        if tag not in self.vmq:
            assert tag in self.done, tag
            return
        idx = max(i for i, t in enumerate(self.vmq) if t == tag)
        n = len(self.vmq) - idx - 1
        assert n <= 63, n
        self.e(f"s_waitcnt vmcnt({n})")
        self.done.update(self.vmq[:idx + 1])
        self.vmq = self.vmq[idx + 1:]
    def wait_vm_all(self):
        self.e("s_waitcnt vmcnt(0)"); self.vmq = []
    def text(self): return "\n".join(self.lines) + "\n"

def vr(b, n): return f"v[{b}:{b+n-1}]"
def sr(b, n): return f"s[{b}:{b+n-1}]"
def f32bits(x): return struct.unpack("<I", struct.pack("<f", x))[0]
SCALE_LOG2E = 0.08838834764831845 * 1.4426950408889634
FULL = "row_mask:0xf bank_mask:0xf"

YROW = 2176
WS_Y = 0
WS_Z = 640 * 1024
WS_FLAG = WS_Z + 512 * 1024
WS_QX = WS_FLAG + 256 * 128
WS_EPOCH = WS_QX + 256 * 256
WS_SIZE = WS_EPOCH + 4 * 128
WS_STAMP = 2 * 1024 * 1024
assert 256 * YROW <= WS_Z

sK, sV, sWQ, sWO, sX, sW1, sW2, sWS = 24, 28, 32, 36, 40, 44, 48, 52
sH, sB, sS, sW, sU, sIDX = 56, 57, 58, 59, 60, 61
sT0, sT1, sT2, sT3 = 62, 63, 64, 65
sEX = 66
sDBG = 68
sPLO, sPHI, sC = 72, 73, 74
sCNT = 75
sCG = 78
sPAR = 76
sOUT = 28
sST = 82

def srd(a, d, plo, off_sgpr, nrec):
    if off_sgpr is None:
        a.e(f"s_mov_b32 s{d}, s{plo}")
        a.e(f"s_and_b32 s{d+1}, s{plo+1}, 0xffff")
    else:
        a.e(f"s_add_u32 s{d}, s{plo}, s{off_sgpr}")
        a.e(f"s_addc_u32 s{d+1}, s{plo+1}, 0")
        a.e(f"s_and_b32 s{d+1}, s{d+1}, 0xffff")
    a.e(f"s_mov_b32 s{d+2}, {nrec}")
    a.e(f"s_mov_b32 s{d+3}, 0x00020000")

def reduce_scatter8(a, base):
    for k in range(4):
        a.e(f"v_permlane32_swap_b32 v{base+k}, v{base+4+k}")
    a.e("s_nop 1")
    for k in range(4):
        a.e(f"v_add_f32 v{base+k}, v{base+k}, v{base+4+k}")
    a.e("s_nop 1")
    for k in range(2):
        a.e(f"v_permlane16_swap_b32 v{base+k}, v{base+2+k}")
    a.e("s_nop 1")
    for k in range(2):
        a.e(f"v_add_f32 v{base+k}, v{base+k}, v{base+2+k}")

def allred_rows(a, reg, t0, t1, op):
    a.e(f"v_mov_b32 v{t0}, v{reg}")
    a.e(f"v_mov_b32 v{t1}, v{reg}")
    a.e("s_nop 1")
    a.e(f"v_permlane32_swap_b32 v{t0}, v{t1}")
    a.e("s_nop 1")
    a.e(f"{op} v{t0}, v{t0}, v{t1}")
    a.e(f"v_mov_b32 v{t1}, v{t0}")
    a.e("s_nop 1")
    a.e(f"v_permlane16_swap_b32 v{t0}, v{t1}")
    a.e("s_nop 1")
    a.e(f"{op} v{reg}, v{t0}, v{t1}")

def gen(opt):
    a = Asm()
    pol = (" " + opt.policy) if opt.policy else ""
    wpol = (" " + opt.wpolicy) if opt.wpolicy else ""
    LAF, P0 = opt.la, opt.p0
    LA = int(LAF)
    sched = {}
    if opt.lasched:
        for item in opt.lasched.split(","):
            t_, v_ = item.split(":")
            sched[int(t_)] = float(v_)
    def la_of_tile(t):
        v = LAF
        for t_ in sorted(sched):
            if t >= t_: v = sched[t_]
        return v
    def la_at(g):
        v = la_of_tile(g // 16)
        base = int(v); fr = v - base
        return base + (1 if int((g + 1) * fr + 1e-9) > int(g * fr + 1e-9) else 0)
    assert LA <= P0 <= 16
    in_aux = [False]
    def stamp(i):
        if opt.stamps and not (opt.qdbg and in_aux[0] and 1 <= i <= 5):
            a.e(f"s_memrealtime {sr(sST+2*i,2)}")
    def qstamp(i):
        if opt.stamps and opt.qdbg:
            a.e(f"s_memrealtime {sr(sST+2*i,2)}")
    def dump_stamps(vT, vS, vLane, n):
        a.e("s_waitcnt lgkmcnt(0)")
        a.e(f"s_mov_b32 s{sWS+2}, 0x1000000")
        a.e(f"s_lshl_b32 s{sT0}, s2, 4")
        a.e(f"s_add_u32 s{sT0}, s{sT0}, s{sW}")
        a.e(f"s_lshl_b32 s{sT0}, s{sT0}, 7")
        a.e(f"s_add_u32 s{sT0}, s{sT0}, {WS_STAMP}")
        a.e(f"v_cmp_eq_u32 vcc, 0, v{vLane}")
        a.e(f"s_and_saveexec_b64 {sr(sEX,2)}, vcc")
        for i in range(n):
            a.e(f"v_mov_b32 v{vT}, {i*8}")
            a.e(f"v_mov_b32 v{vS}, s{sST+2*i}")
            a.e(f"v_mov_b32 v{vS+1}, s{sST+2*i+1}")
            a.e(f"buffer_store_dwordx2 {vr(vS,2)}, v{vT}, {sr(sWS,4)}, s{sT0} offen")
            a.e("s_nop 1")

    vLane, vK0, vK1 = 1, 2, 3
    vQ, vO, vS = 4, 8, 16
    vM, vL, vPlo, vPhi, vAl = 24, 25, 26, 27, 28
    vT = 29
    vL16, vA0, vA1 = 34, 35, 36
    vKb, vVb, vWQ = 40, 72, 104
    NV = 168
    LDS_QP, LDS_QF, LDS_OP, LDS_ML, LDS_FLAG = (0, 2048, 4096, 8192, 8320) if opt.coop else (0, 0, 4096, 8192, 8320)
    LDS_SIZE = 8448

    K1 = f"{NAME}_kernel"
    a.raw(f".globl {K1}")
    a.raw(".p2align 8")
    a.raw(f".type {K1},@function")
    a.label(K1)
    a.e("s_cmp_ge_u32 s2, 256")
    a.e("s_cbranch_scc1 L_end")
    stamp(0)
    a.e("s_load_dwordx16 s[4:19], s[0:1], 0")
    a.e("s_load_dwordx2 s[20:21], s[0:1], 64")
    a.e("s_load_dwordx2 s[22:23], s[0:1], 104")
    a.c("workgroup id -> head, batch, key half")
    a.e(f"v_lshrrev_b32 v{vT}, 6, v0")
    a.e(f"s_and_b32 s{sT0}, s2, 7")
    a.e(f"s_lshr_b32 s{sT1}, s2, 3")
    a.e(f"v_readfirstlane_b32 s{sW}, v{vT}")
    a.e(f"s_lshr_b32 s{sT2}, s{sT1}, 3")
    if opt.map == "g3":
        a.e(f"s_lshl_b32 s{sH}, s{sT0}, 2")
        a.e(f"s_add_u32 s{sH}, s{sH}, s{sT2}")
    else:
        a.e(f"s_lshl_b32 s{sH}, s{sT2}, 3")
        a.e(f"s_add_u32 s{sH}, s{sH}, s{sT0}")
    a.e(f"s_and_b32 s{sT1}, s{sT1}, 7")
    a.e(f"s_lshr_b32 s{sB}, s{sT1}, 1")
    a.e(f"s_and_b32 s{sS}, s{sT1}, 1")
    a.e(f"s_lshl_b32 s{sU}, s{sH}, 1")
    a.e(f"s_add_u32 s{sU}, s{sU}, s{sS}")
    a.e(f"s_lshl_b32 s{sIDX}, s{sB}, 6")
    a.e(f"s_add_u32 s{sIDX}, s{sIDX}, s{sU}")
    a.e(f"v_and_b32 v{vLane}, 63, v0")
    a.e(f"s_mov_b32 s{sPLO}, 0x05040100")
    a.e(f"s_mov_b32 s{sPHI}, 0x07060302")
    a.e(f"s_cmp_eq_u32 s{sW}, 8")
    a.e("s_cbranch_scc1 L_aux")

    if opt.coop:
        vWX, vXQ, vAcc = vWQ, vWQ + 8, vWQ + 12
        a.e(f"v_lshrrev_b32 v{vT}, 1, v{vLane}")
        a.e(f"v_and_b32 v{vT+1}, 1, v{vLane}")
        a.e(f"s_lshl_b32 s{sT0}, s{sW}, 5")
        a.e(f"v_add_u32 v{vT+2}, s{sT0}, v{vT}")
        a.e(f"v_lshlrev_b32 v{vT+3}, 14, v{vT+2}")
        a.e(f"v_lshl_add_u32 v{vT+3}, v{vT+1}, 4, v{vT+3}")
        a.e(f"v_lshlrev_b32 v{vT+2}, 2, v{vT+2}")
        a.e(f"v_lshlrev_b32 v{vL16}, 4, v{vLane}")
        a.e(f"s_lshl_b32 s{sT0}, s{sW}, 13")
        a.e(f"v_add_u32 v{vK0}, s{sT0}, v{vL16}")
        a.e(f"v_add_u32 v{vK1}, 0x1000, v{vK0}")
        a.e(f"s_lshl_b32 s{sT0}, s{sH}, 8")
        a.e(f"s_lshl_b32 s{sT1}, s{sT1}, 5")
        a.e(f"s_add_u32 s{sT0}, s{sT0}, s{sT1}")
        a.e(f"s_lshl_b32 s{sT1}, s{sB}, 5")
        a.e(f"s_add_u32 s{sT1}, s{sT1}, s{sH}")
        a.e(f"s_lshl_b32 s{sT1}, s{sT1}, 1")
        a.e(f"s_add_u32 s{sT1}, s{sT1}, s{sS}")
        a.e(f"s_lshl_b32 s{sT1}, s{sT1}, 20")
        a.e(f"s_mov_b32 s{sT2}, 0x2000")
        a.e("s_waitcnt lgkmcnt(0)")
        srd(a, sWQ, 10, sT0, "0x400000")
        a.e(f"s_sub_u32 s{sWQ+2}, s{sWQ+2}, s{sT0}")
        srd(a, sX, 4, None, "0x1000")
        a.vmem(f"buffer_load_dwordx4 {vr(vWX,4)}, v{vT+3}, {sr(sWQ,4)}, 0 offen{wpol}", "wq0")
        a.vmem(f"buffer_load_dwordx4 {vr(vWX+4,4)}, v{vT+3}, {sr(sWQ,4)}, s{sT2} offen{wpol}", "wq1")
        for b_ in range(4):
            a.vmem(f"buffer_load_dword v{vXQ+b_}, v{vT+2}, {sr(sX,4)}, 0 offen offset:{b_*1024}", f"x{b_}")
        srd(a, sK, 6, sT1, "0x100000")
        srd(a, sV, 8, sT1, "0x100000")
        def slot_reg(t, n):
            if t == 1 and n < opt.ext: return vWQ + 4*n
            return (vKb if n < 8 else vVb) + 4*(n & 7)
        def slot_load(n, t=0):
            j = n & 7
            s_ = sK if n < 8 else sV
            return f"buffer_load_dwordx4 {vr(slot_reg(t, n),4)}, v{vK0+(j>>2)}, {sr(s_,4)}, 0 offen offset:{(j&3)*1024}{pol}"
        NT = 16
        issued = 0
        def issue_upto(g):
            nonlocal issued
            while issued <= g and issued < NT * 16:
                t, n = divmod(issued, 16)
                if n == 0 and t > 0:
                    a.e(f"v_add_u32 v{vK0}, 0x10000, v{vK0}")
                    a.e(f"v_add_u32 v{vK1}, 0x10000, v{vK1}")
                a.vmem(slot_load(n, t), f"t{t}n{n}")
                issued += 1
        issue_upto(opt.pa - 1)
        a.c("remaining descriptors and lane constants")
        a.e(f"s_lshl_b32 s{sT0}, s{sH}, 17")
        a.e(f"s_lshl_b32 s{sT2}, s{sW}, 7")
        a.e(f"s_add_u32 s{sT0}, s{sT0}, s{sT2}")
        srd(a, sWO, 12, sT0, "0x20000")
        a.e(f"s_sub_u32 s{sWO+2}, s{sWO+2}, s{sT2}")
        srd(a, sWS, 22, None, f"0x{WS_SIZE:x}")
        a.e(f"s_mov_b32 s{sC}, 0x{f32bits(SCALE_LOG2E):08x}")
        a.e(f"s_mov_b32 s{sPAR}, 0xaaaaaaaa")
        a.e(f"s_mov_b32 s{sPAR+1}, 0xaaaaaaaa")
        a.e(f"v_lshrrev_b32 v{vT}, 4, v{vLane}")
        a.e(f"v_and_b32 v{vT+1}, 15, v{vLane}")
        a.e(f"v_lshlrev_b32 v{vA0}, 3, v{vT}")
        a.e(f"v_lshl_add_u32 v{vA0}, v{vT+1}, 5, v{vA0}")
        a.e(f"v_lshrrev_b32 v{vA1}, 3, v{vLane}")
        a.e(f"v_lshlrev_b32 v{vA1}, 11, v{vA1}")
        a.e(f"v_and_b32 v{vT+2}, 7, v{vLane}")
        a.e(f"v_lshl_add_u32 v{vA1}, v{vT+2}, 4, v{vA1}")
        a.e(f"v_lshlrev_b32 v{vT+2}, 6, v{vT}")
        a.e(f"v_and_b32 v{vT+3}, 1, v{vLane}")
        a.e(f"v_lshl_add_u32 v{vT+2}, v{vT+3}, 5, v{vT+2}")
        a.e(f"s_lshl_b32 s{sT0}, s{sW}, 8")
        a.e(f"v_add_u32 v{vT+2}, s{sT0}, v{vT+2}")
        stamp(1)
        a.c("q piece: 16 columns x 4 batches over this wave's 64 rows of wq")
        a.wait_vm("x3")
        for d in range(4):
            a.e(f"v_perm_b32 v{vT}, v{vWX+4+d}, v{vWX+d}, s{sPLO}")
            a.e(f"v_perm_b32 v{vT+1}, v{vWX+4+d}, v{vWX+d}, s{sPHI}")
            for b_ in range(4):
                a.e(f"v_dot2_f32_bf16 v{vAcc+8*b_+2*d}, v{vT}, v{vXQ+b_}, 0")
                a.e(f"v_dot2_f32_bf16 v{vAcc+8*b_+2*d+1}, v{vT+1}, v{vXQ+b_}, 0")
        a.e("s_nop 2")
        for k in range(16):
            a.e(f"v_permlane32_swap_b32 v{vAcc+k}, v{vAcc+16+k}")
        for k in range(16):
            a.e(f"v_add_f32 v{vAcc+k}, v{vAcc+k}, v{vAcc+16+k}")
        for k in range(8):
            a.e(f"v_permlane16_swap_b32 v{vAcc+k}, v{vAcc+8+k}")
        for k in range(8):
            a.e(f"v_add_f32 v{vAcc+k}, v{vAcc+k}, v{vAcc+8+k}")
        for m in ("row_ror:8", "row_ror:4", "quad_perm:[2,3,0,1]"):
            for k in range(8):
                a.e(f"v_add_f32_dpp v{vAcc+k}, v{vAcc+k}, v{vAcc+k} {m} {FULL}")
        a.e(f"ds_write_b128 v{vT+2}, {vr(vAcc,4)} offset:{LDS_QP}")
        a.e(f"ds_write_b128 v{vT+2}, {vr(vAcc+4,4)} offset:{LDS_QP+16}")
        stamp(2)
        a.e("s_waitcnt lgkmcnt(0)")
        a.e("s_barrier")
        if opt.pace:
            while issued < P0 + opt.ext:
                if issued - opt.pace >= 0:
                    tt, nn = divmod(issued - opt.pace, 16)
                    a.wait_vm(f"t{tt}n{nn}")
                issue_upto(issued)
        else:
            issue_upto(P0 + opt.ext - 1)
        for k in range(8):
            a.e(f"v_mov_b32 v{vO+k}, 0")
        a.e(f"v_mov_b32 v{vM}, 0xff7fffff")
        a.e(f"v_mov_b32 v{vL}, 0")
        a.e(f"v_and_b32 v{vT}, 15, v{vLane}")
        a.e(f"v_lshlrev_b32 v{vT}, 4, v{vT}")
        a.e("s_barrier")
        a.e(f"ds_read_b128 {vr(vQ,4)}, v{vT} offset:{LDS_QF}")
        a.e("s_waitcnt lgkmcnt(0)")
        stamp(3)

    else:
        if opt.rot:
            a.e(f"s_add_u32 s{sT3}, s{sW}, s{sT1}")
            a.e(f"s_and_b32 s{sT3}, s{sT3}, 7")
        else:
            a.e(f"s_mov_b32 s{sT3}, s{sW}")
        a.e(f"v_lshrrev_b32 v{vT}, 4, v{vLane}")
        a.e(f"v_and_b32 v{vT+1}, 15, v{vLane}")
        a.e(f"v_lshlrev_b32 v{vT+2}, 5, v{vT}")
        a.e(f"v_lshlrev_b32 v{vT+3}, 17, v{vT}")
        a.e(f"v_lshl_add_u32 v{vT+3}, v{vT+1}, 4, v{vT+3}")
        a.e(f"v_lshlrev_b32 v{vA0}, 3, v{vT}")
        a.e(f"v_lshl_add_u32 v{vA0}, v{vT+1}, 5, v{vA0}")
        a.e(f"v_lshlrev_b32 v{vL16}, 4, v{vLane}")
        a.e(f"s_lshl_b32 s{sT0}, s{sW}, 13")
        a.e(f"v_add_u32 v{vK0}, s{sT0}, v{vL16}")
        a.e(f"v_add_u32 v{vK1}, 0x1000, v{vK0}")
        a.e(f"s_lshl_b32 s{sT1}, s{sB}, 10")
        a.e(f"s_lshl_b32 s{sT2}, s{sT3}, 7")
        a.e(f"s_add_u32 s{sT1}, s{sT1}, s{sT2}")
        a.e(f"s_lshl_b32 s{sT2}, s{sT3}, 19")
        a.e(f"s_lshl_b32 s{sT0}, s{sH}, 8")
        a.e("s_waitcnt lgkmcnt(0)")
        srd(a, sX, 4, None, "0x1000")
        srd(a, sWQ, 10, sT0, "0x400000")
        a.e(f"s_sub_u32 s{sWQ+2}, s{sWQ+2}, s{sT0}")
        vXQ = vS
        if opt.q:
            a.vmem(f"buffer_load_dwordx4 {vr(vXQ,4)}, v{vT+2}, {sr(sX,4)}, s{sT1} offen", "xq")
            a.vmem(f"buffer_load_dwordx4 {vr(vXQ+4,4)}, v{vT+2}, {sr(sX,4)}, s{sT1} offen offset:16", "xq")
        a.e(f"s_lshl_b32 s{sT0}, s{sB}, 5")
        a.e(f"s_add_u32 s{sT0}, s{sT0}, s{sH}")
        a.e(f"s_lshl_b32 s{sT0}, s{sT0}, 1")
        a.e(f"s_add_u32 s{sT0}, s{sT0}, s{sS}")
        a.e(f"s_lshl_b32 s{sT0}, s{sT0}, 20")
        srd(a, sK, 6, sT0, "0x100000")
        srd(a, sV, 8, sT0, "0x100000")
        def slot_reg(t, n):
            if t == 1 and n < opt.ext: return vWQ + 4*n
            return (vKb if n < 8 else vVb) + 4*(n & 7)
        def slot_load(n, t=0):
            j = n & 7
            s_ = sK if n < 8 else sV
            return f"buffer_load_dwordx4 {vr(slot_reg(t, n),4)}, v{vK0+(j>>2)}, {sr(s_,4)}, 0 offen offset:{(j&3)*1024}{pol}"
        NT = 16
        issued = 0
        def issue_upto(g):
            nonlocal issued
            while issued <= g and issued < NT * 16:
                t, n = divmod(issued, 16)
                if n == 0 and t > 0:
                    a.e(f"v_add_u32 v{vK0}, 0x10000, v{vK0}")
                    a.e(f"v_add_u32 v{vK1}, 0x10000, v{vK1}")
                a.vmem(slot_load(n, t), f"t{t}n{n}")
                issued += 1
        PA, PB = opt.pa, opt.pb
        for j in range(16 if opt.q else 0):
            a.vmem(f"buffer_load_dwordx4 {vr(vWQ+4*j,4)}, v{vT+3}, {sr(sWQ,4)}, s{sT2} offen{wpol}", f"wq{j}")
            if j < 15:
                a.e(f"s_add_u32 s{sT2}, s{sT2}, 0x2000")
            if (j + 1) % opt.ilv == 0 and issued < PA:
                issue_upto(issued)
        issue_upto(min(P0, PA + PB) - 1)
        a.e(f"s_lshl_b32 s{sT0}, s{sH}, 17")
        a.e(f"s_lshl_b32 s{sT2}, s{sW}, 7")
        a.e(f"s_add_u32 s{sT0}, s{sT0}, s{sT2}")
        srd(a, sWO, 12, sT0, "0x20000")
        a.e(f"s_sub_u32 s{sWO+2}, s{sWO+2}, s{sT2}")
        a.e(f"v_lshrrev_b32 v{vA1}, 3, v{vLane}")
        a.e(f"v_lshlrev_b32 v{vA1}, 11, v{vA1}")
        a.e(f"v_and_b32 v{vT}, 7, v{vLane}")
        a.e(f"v_lshl_add_u32 v{vA1}, v{vT}, 4, v{vA1}")
        srd(a, sWS, 22, None, f"0x{WS_SIZE:x}")
        a.e(f"s_mov_b32 s{sC}, 0x{f32bits(SCALE_LOG2E):08x}")
        a.e(f"s_mov_b32 s{sPAR}, 0xaaaaaaaa")
        a.e(f"s_mov_b32 s{sPAR+1}, 0xaaaaaaaa")
        for k in range(8):
            a.e(f"v_mov_b32 v{vO+k}, 0")
        stamp(1)
        a.c("q partial sums over this wave's 64 rows of wq")
        for p in range(8 if opt.q else 0):
            a.wait_vm(f"wq{2*p+1}")
            for d in range(4):
                r0 = vWQ + 8*p + d
                r1 = vWQ + 8*p + 4 + d
                a.e(f"v_perm_b32 v{vT}, v{r1}, v{r0}, s{sPLO}")
                a.e(f"v_perm_b32 v{vT+1}, v{r1}, v{r0}, s{sPHI}")
                a.e(f"v_dot2c_f32_bf16 v{vO+2*d}, v{vT}, v{vXQ+p}")
                a.e(f"v_dot2c_f32_bf16 v{vO+2*d+1}, v{vT+1}, v{vXQ+p}")
            if issued < P0: issue_upto(issued)
        issue_upto(P0 - 1)
        if opt.preext:
            issue_upto(P0 + opt.preext - 1)
        a.e(f"s_lshl_b32 s{sT0}, s{sW}, 9")
        a.e(f"v_add_u32 v{vT+2}, s{sT0}, v{vA0}")
        a.e("s_nop 0")
        reduce_scatter8(a, vO)
        a.e(f"ds_write_b64 v{vT+2}, {vr(vO,2)} offset:{LDS_QP}")
        stamp(2)
        a.e("s_waitcnt lgkmcnt(0)")
        a.e("s_barrier")
        if opt.ext:
            assert P0 == 16
            issue_upto(15 + opt.ext)
        a.c("q: lane (g,i) sums columns 8i+2g, 8i+2g+1 over the 8 waves, then the rows exchange their pairs")
        for x in range(8):
            a.e(f"ds_read_b64 {vr(vS+ (2*x if x < 4 else 0), 2) if x < 4 else vr(vO+2*(x-4), 2)}, v{vA0} offset:{LDS_QP + x*512}")
        a.e("s_waitcnt lgkmcnt(0)")
        for k in range(2):
            a.e(f"v_add_f32 v{vS+k}, v{vS+k}, v{vS+2+k}")
            a.e(f"v_add_f32 v{vS+4+k}, v{vS+4+k}, v{vS+6+k}")
            a.e(f"v_add_f32 v{vO+k}, v{vO+k}, v{vO+2+k}")
            a.e(f"v_add_f32 v{vO+4+k}, v{vO+4+k}, v{vO+6+k}")
        for k in range(2):
            a.e(f"v_add_f32 v{vS+k}, v{vS+k}, v{vS+4+k}")
            a.e(f"v_add_f32 v{vO+k}, v{vO+k}, v{vO+4+k}")
        for k in range(2):
            a.e(f"v_add_f32 v{vS+k}, v{vS+k}, v{vO+k}")
        a.e(f"v_cvt_pk_bf16_f32 v{vQ}, v{vS}, v{vS+1}")
        a.e(f"v_mov_b32 v{vQ+1}, v{vQ}")
        a.e("s_nop 1")
        a.e(f"v_permlane16_swap_b32 v{vQ}, v{vQ+1}")
        a.e("s_nop 1")
        a.e(f"v_mov_b32 v{vQ+2}, v{vQ}")
        a.e(f"v_mov_b32 v{vQ+3}, v{vQ+1}")
        a.e("s_nop 1")
        a.e(f"v_permlane32_swap_b32 v{vQ}, v{vQ+2}")
        a.e(f"v_permlane32_swap_b32 v{vQ+1}, v{vQ+3}")
        for k in range(8):
            a.e(f"v_mov_b32 v{vO+k}, 0")
        a.e(f"v_mov_b32 v{vM}, 0xff7fffff")
        a.e(f"v_mov_b32 v{vL}, 0")
        stamp(3)


    def pos(j): return 4*(j >> 1) + (j & 1)
    def wo_load(j):
        a.e(f"s_mov_b32 s{sT2}, {(16*(j>>1) + (j&1))*1024}")
        a.vmem(f"buffer_load_dwordx4 {vr(vWQ+4*j,4)}, v{vA1}, {sr(sWO,4)}, s{sT2} offen{wpol}", f"wo{j}")
    def wo_perm(p):
        for d in range(4):
            r0 = vWQ + 8*p + d
            r1 = vWQ + 8*p + 4 + d
            a.e(f"v_perm_b32 v{vT}, v{r1}, v{r0}, s{sPLO}")
            a.e(f"v_perm_b32 v{r1}, v{r1}, v{r0}, s{sPHI}")
            a.e(f"v_mov_b32 v{r0}, v{vT}")
    for t in range(NT):
        a.c(f"tile {t}")
        if t == 1: stamp(4)
        if t == opt.ztile:
            a.c("tell the auxiliary wave that the FFN rows of all workgroups are long due (wave 0 only)")
            a.e(f"s_cmp_lg_u32 s{sW}, 0")
            a.e(f"s_cbranch_scc1 L_noflag")
            a.e(f"v_mov_b32 v{vT}, {LDS_FLAG}")
            a.e(f"v_mov_b32 v{vT+1}, 1")
            a.e(f"ds_write_b32 v{vT}, v{vT+1}")
            a.label("L_noflag")
        for j in range(8):
            a.wait_vm(f"t{t}n{j}")
            issue_upto(16*t + j + la_at(16*t + j))
            if j == 0 and opt.wot <= t < opt.wot + 8 and opt.wo:
                wo_load(2*(t-opt.wot)); wo_load(2*(t-opt.wot)+1)
            if opt.nocomp & 1: continue
            kr = slot_reg(t, j)
            a.e(f"v_dot2_f32_bf16 v{vS+j}, v{kr}, v{vQ}, 0")
            for d in range(1, 4):
                a.e(f"v_dot2_f32_bf16 v{vS+j}, v{kr+d}, v{vQ+d}, v{vS+j}")
        mark = len(a.lines)
        a.e("s_nop 2")
        for j in range(4):
            a.e(f"v_add_f32_dpp v{vS+j}, v{vS+j}, v{vS+j} row_ror:8 row_mask:0xf bank_mask:0x3")
        for j in range(4):
            a.e(f"v_add_f32_dpp v{vS+j}, v{vS+j+4}, v{vS+j+4} row_ror:8 row_mask:0xf bank_mask:0xc")
        for j in range(2):
            a.e(f"v_add_f32_dpp v{vS+j}, v{vS+j}, v{vS+j} row_half_mirror row_mask:0xf bank_mask:0x5")
        for j in range(2):
            a.e(f"v_add_f32_dpp v{vS+j}, v{vS+j+2}, v{vS+j+2} row_half_mirror row_mask:0xf bank_mask:0xa")
        a.e("s_nop 0")
        for j in range(2):
            a.e(f"v_add_f32_dpp v{vS+j}, v{vS+j}, v{vS+j} quad_perm:[1,0,3,2] {FULL}")
        a.e("s_nop 0")
        a.e(f"v_cndmask_b32 v{vT}, v{vS}, v{vS+1}, {sr(sPAR,2)}")
        a.e("s_nop 1")
        a.e(f"v_add_f32_dpp v{vT}, v{vT}, v{vT} quad_perm:[2,3,0,1] {FULL}")
        a.e(f"v_mul_f32 v{vT}, s{sC}, v{vT}")
        a.e("s_nop 1")
        a.e(f"v_max_f32_dpp v{vT+1}, v{vT}, v{vT} quad_perm:[1,0,3,2] {FULL}")
        a.e("s_nop 1")
        a.e(f"v_max_f32_dpp v{vT+1}, v{vT+1}, v{vT+1} row_ror:4 {FULL}")
        a.e("s_nop 1")
        a.e(f"v_max_f32_dpp v{vT+1}, v{vT+1}, v{vT+1} row_ror:8 {FULL}")
        a.e(f"v_max_f32 v{vT+1}, v{vT+1}, v{vM}")
        a.e(f"v_sub_f32 v{vAl}, v{vM}, v{vT+1}")
        a.e(f"v_sub_f32 v{vT}, v{vT}, v{vT+1}")
        a.e(f"v_exp_f32 v{vAl}, v{vAl}")
        a.e(f"v_exp_f32 v{vT}, v{vT}")
        a.e(f"v_mov_b32 v{vM}, v{vT+1}")
        a.e(f"v_cvt_pk_bf16_f32 v{vPlo}, v{vT}, 0")
        a.e(f"v_cvt_pk_bf16_f32 v{vPhi}, 0, v{vT}")
        a.e(f"v_fma_f32 v{vL}, v{vL}, v{vAl}, v{vT}")
        for k in range(8):
            a.e(f"v_mul_f32 v{vO+k}, v{vAl}, v{vO+k}")
        if opt.nocomp & 2: del a.lines[mark:]
        for j in range(8):
            a.wait_vm(f"t{t}n{8+j}")
            issue_upto(16*t + 8 + j + la_at(16*t + 8 + j))
            vr_ = slot_reg(t, 8 + j)
            for d in range(4 if not (opt.nocomp & 4) else 0):
                a.e(f"v_dot2c_f32_bf16_dpp v{vO+2*d}, v{vPlo}, v{vr_+d} row_newbcast:{pos(j)} {FULL}")
                a.e(f"v_dot2c_f32_bf16_dpp v{vO+2*d+1}, v{vPhi}, v{vr_+d} row_newbcast:{pos(j)} {FULL}")
        if opt.wo and opt.wot + 1 <= t <= opt.wot + 8:
            wo_perm(t - 1 - opt.wot)
    stamp(5)
    a.c("in-wave combine of the 4 lane rows")
    a.e(f"v_mov_b32 v{vT+2}, v{vM}")
    allred_rows(a, vT+2, vT, vT+1, "v_max_f32")
    a.e(f"v_sub_f32 v{vAl}, v{vM}, v{vT+2}")
    a.e(f"v_exp_f32 v{vAl}, v{vAl}")
    a.e(f"v_mov_b32 v{vM}, v{vT+2}")
    a.e(f"v_mul_f32 v{vL}, v{vAl}, v{vL}")
    for k in range(8):
        a.e(f"v_mul_f32 v{vO+k}, v{vAl}, v{vO+k}")
    a.e(f"v_add_f32_dpp v{vL}, v{vL}, v{vL} quad_perm:[1,0,3,2] {FULL}")
    a.e(f"s_lshl_b32 s{sT0}, s{sW}, 9")
    a.e(f"v_add_u32 v{vT+2}, s{sT0}, v{vA0}")
    a.e(f"v_add_f32_dpp v{vL}, v{vL}, v{vL} quad_perm:[2,3,0,1] {FULL}")
    reduce_scatter8(a, vO)
    a.e(f"ds_write_b64 v{vT+2}, {vr(vO,2)} offset:{LDS_OP}")
    a.e(f"v_add_f32_dpp v{vL}, v{vL}, v{vL} row_ror:4 {FULL}")
    a.e(f"s_lshl_b32 s{sT0}, s{sW}, 3")
    a.e(f"v_mov_b32 v{vT+2}, s{sT0}")
    a.e(f"v_add_f32_dpp v{vL}, v{vL}, v{vL} row_ror:8 {FULL}")
    allred_rows(a, vL, vT, vT+1, "v_add_f32")
    a.e(f"v_mul_f32 v{vL}, 0.5, v{vL}")
    a.e(f"ds_write_b64 v{vT+2}, {vr(vM,2)} offset:{LDS_ML}")
    for k in range(8):
        a.e(f"v_mov_b32 v{vS+k}, 0")
    a.e(f"v_lshrrev_b32 v{vT}, 3, v{vLane}")
    a.e(f"v_and_b32 v{vT+1}, 7, v{vLane}")
    a.e(f"v_lshlrev_b32 v{vT}, 3, v{vT}")
    a.e(f"v_lshl_add_u32 v{vT}, v{vT+1}, 6, v{vT}")
    a.e(f"v_mov_b32 v{vT+1}, 0")
    a.e("s_waitcnt lgkmcnt(0)")
    a.e("s_barrier")
    stamp(6)
    a.c("merge the 8 waves: this lane owns the dimension pair (16*c8 + 2r, +1)")
    vML, vOP = vKb, vVb
    for x in range(4):
        a.e(f"ds_read_b128 {vr(vML+4*x,4)}, v{vT+1} offset:{LDS_ML + 16*x}")
    for x in range(8):
        a.e(f"ds_read_b64 {vr(vOP+2*x,2)}, v{vT} offset:{LDS_OP + x*512}")
    a.e("s_waitcnt lgkmcnt(8)")
    a.e(f"v_max3_f32 v{vM}, v{vML}, v{vML+2}, v{vML+4}")
    a.e(f"v_max3_f32 v{vT+2}, v{vML+6}, v{vML+8}, v{vML+10}")
    a.e(f"v_max3_f32 v{vM}, v{vM}, v{vML+12}, v{vML+14}")
    a.e(f"v_max_f32 v{vM}, v{vM}, v{vT+2}")
    for x in range(8):
        a.e(f"v_sub_f32 v{vML+2*x}, v{vML+2*x}, v{vM}")
    for x in range(8):
        a.e(f"v_exp_f32 v{vML+2*x}, v{vML+2*x}")
    a.e(f"v_mul_f32 v{vL}, v{vML}, v{vML+1}")
    for x in range(1, 8):
        a.e(f"v_fma_f32 v{vL}, v{vML+2*x}, v{vML+2*x+1}, v{vL}")
    a.e("s_waitcnt lgkmcnt(0)")
    a.e(f"v_mul_f32 v{vO}, v{vML}, v{vOP}")
    a.e(f"v_mul_f32 v{vO+1}, v{vML}, v{vOP+1}")
    for x in range(1, 8):
        a.e(f"v_fma_f32 v{vO}, v{vML+2*x}, v{vOP+2*x}, v{vO}")
        a.e(f"v_fma_f32 v{vO+1}, v{vML+2*x}, v{vOP+2*x+1}, v{vO+1}")
    a.e(f"v_cvt_pk_bf16_f32 v{vPlo}, v{vO}, v{vO+1}")
    a.e(f"s_mul_i32 s{sT0}, s{sIDX}, {YROW}")
    a.e(f"s_add_u32 s{sT2}, s{sT0}, 2048")
    a.c("row group r = 2g + (i>>3) needs the pairs held by lanes (r, j') : broadcast inside half rows")
    for j in range(8):
        a.e(f"v_mov_b32_dpp v{vO+j}, v{vPlo} row_newbcast:{j} row_mask:0xf bank_mask:0x3")
    for j in range(8):
        a.e(f"v_mov_b32_dpp v{vO+j}, v{vPlo} row_newbcast:{8+j} row_mask:0xf bank_mask:0xc")
    a.c("projection: 64 columns of this wave, all 128 rows of the head (wo pre-permuted into row pairs)")
    for p in range(8):
        for d in range(4):
            r0 = vWQ + 8*p + d
            r1 = vWQ + 8*p + 4 + d
            a.e(f"v_dot2c_f32_bf16 v{vS+2*d}, v{vO+p}, v{r0}")
            a.e(f"v_dot2c_f32_bf16 v{vS+2*d+1}, v{vO+p}, v{r1}")
    a.e(f"v_and_b32 v{vT}, 7, v{vLane}")
    a.e(f"v_lshlrev_b32 v{vT}, 5, v{vT}")
    a.e(f"v_lshrrev_b32 v{vT+1}, 5, v{vLane}")
    a.e(f"v_lshl_add_u32 v{vT}, v{vT+1}, 4, v{vT}")
    a.e(f"s_lshl_b32 s{sT1}, s{sW}, 8")
    a.e(f"s_add_u32 s{sT0}, s{sT0}, s{sT1}")
    for k in range(4):
        a.e(f"v_permlane32_swap_b32 v{vS+k}, v{vS+4+k}")
    a.e("s_nop 1")
    for k in range(4):
        a.e(f"v_add_f32 v{vS+k}, v{vS+k}, v{vS+4+k}")
    a.e("s_nop 0")
    for k in range(4):
        a.e(f"v_add_f32_dpp v{vS+k}, v{vS+k}, v{vS+k} row_ror:8 {FULL}")
    for k in range(4):
        a.e(f"v_mov_b32 v{vS+4+k}, v{vS+k}")
    a.e("s_nop 1")
    for k in range(4):
        a.e(f"v_permlane16_swap_b32 v{vS+k}, v{vS+4+k}")
    a.e("s_nop 1")
    for k in range(4):
        a.e(f"v_add_f32 v{vS+k}, v{vS+k}, v{vS+4+k}")
    a.e(f"v_and_b32 v{vT+1}, 24, v{vLane}")
    a.e(f"v_cmp_eq_u32 vcc, 0, v{vT+1}")
    a.e(f"s_and_saveexec_b64 {sr(sEX,2)}, vcc")
    a.e(f"buffer_store_dwordx4 {vr(vS,4)}, v{vT}, {sr(sWS,4)}, s{sT0} offen sc1")
    a.e(f"s_cmp_lg_u32 s{sW}, 0")
    a.e("s_cbranch_scc1 L_no_ml")
    a.e("s_mov_b64 exec, 1")
    a.e(f"v_mov_b32 v{vT+1}, 0")
    a.e(f"buffer_store_dwordx2 {vr(vM,2)}, v{vT+1}, {sr(sWS,4)}, s{sT2} offen sc1")
    a.label("L_no_ml")
    a.e(f"s_mov_b64 exec, {sr(sEX,2)}")
    stamp(7)
    a.label("L_stream_done")
    if opt.stamps:
        stamp(8)
        a.e("s_waitcnt vmcnt(0)")
        stamp(9)
        dump_stamps(vT, vS, vLane, 10)
    a.e("s_endpgm")

    a.vmq = []
    a.raw(".p2align 6")
    a.label("L_aux")
    uX = 2
    uAcc = 18
    uT = 26
    uW = 40
    uZ = 104
    uML = 112
    uG, uG1, uB2, uOff, uH2, uNeg, uEp = 116, 117, 118, 119, 120, 121, 122
    if opt.pf:
        a.c("warm L2 with this kernel's code (instruction fetch misses then stop at L2)")
        a.e("s_getpc_b64 s[70:71]")
        a.label("L_pc")
        a.e(f"s_sub_u32 s70, s70, L_pc-{K1}")
        a.e("s_subb_u32 s71, s71, 0")
        a.e(f"v_lshlrev_b32 v26, 7, v{vLane}")
        a.e(f"s_mov_b32 s{sT0}, L_code_end-{K1}-4")
        for x in range(opt.pf):
            a.e(f"v_min_u32 v27, s{sT0}, v26")
            a.e(f"v_and_b32 v27, 0xfffffffc, v27")
            a.e(f"global_load_dword v{128+x}, v27, s[70:71]")
            a.e(f"v_add_u32 v26, 0x2000, v26")
    a.e("s_waitcnt lgkmcnt(0)")
    if opt.touch:
        a.c("pull this workgroup's share of the weights used later (wo, w1, w2) into L2 while HBM waits for q:")
        a.c("one dword per 128-byte line")
        if opt.tprio: a.e(f"s_setprio {opt.tprio}")
        a.e(f"s_lshl_b32 s{sT1}, s{sB}, 1")
        a.e(f"s_add_u32 s{sT1}, s{sT1}, s{sS}")
        a.e(f"v_lshlrev_b32 v{uT}, 7, v{vLane}")
        a.e(f"s_lshl_b32 s{sT0}, s{sH}, 17")
        a.e(f"s_lshl_b32 s{sT2}, s{sT1}, 14")
        a.e(f"s_add_u32 s{sT0}, s{sT0}, s{sT2}")
        srd(a, sWO, 12, sT0, "0x4000")
        a.e(f"s_mov_b32 s{sT2}, 0x2000")
        if opt.touch & 1:
            a.e(f"buffer_load_dword v{128}, v{uT}, {sr(sWO,4)}, 0 offen")
            a.e(f"buffer_load_dword v{129}, v{uT}, {sr(sWO,4)}, s{sT2} offen")
        if opt.touch & 2:
            a.c("w1: the 128-byte column block of units 64*(u>>1).. is shared by 8 workgroups: rows 64*r8 + lane")
            a.e(f"s_min_u32 s{sT3}, s{sU}, 55")
            a.e(f"s_lshr_b32 s{sT0}, s{sT3}, 1")
            a.e(f"s_lshl_b32 s{sT0}, s{sT0}, 7")
            srd(a, sW1, 16, sT0, "0x1c0000")
            a.e(f"s_sub_u32 s{sW1+2}, s{sW1+2}, s{sT0}")
            a.e(f"s_lshl_b32 s{sT2}, s{sT1}, 6")
            a.e(f"v_add_u32 v{uT+1}, s{sT2}, v{vLane}")
            a.e(f"v_mul_u32_u24 v{uT+1}, 3584, v{uT+1}")
            a.e(f"buffer_load_dword v{130}, v{uT+1}, {sr(sW1,4)}, 0 offen")
            a.c("w2: 32 rows of this slice are shared by the 4 batches: 8 KiB each")
            a.e(f"s_lshl_b32 s{sT0}, s{sT3}, 15")
            a.e(f"s_lshl_b32 s{sT2}, s{sB}, 13")
            a.e(f"s_add_u32 s{sT0}, s{sT0}, s{sT2}")
            srd(a, sW2, 20, sT0, "0x2000")
            a.e(f"buffer_load_dword v{131}, v{uT}, {sr(sW2,4)}, 0 offen")
        if opt.tprio: a.e("s_setprio 0")
    a.e("s_load_dwordx4 s[8:11], s[0:1], 72")
    a.e("s_load_dwordx4 s[12:15], s[0:1], 88")
    a.e("s_waitcnt lgkmcnt(0)")
    srd(a, sX, 4, None, "0x1000")
    srd(a, sWS, 22, None, f"0x{WS_SIZE:x}")
    if opt.cgmap:
        a.c("column group: workgroups that share cache lines of the partial rows sit on one XCD when ids are dealt round-robin")
        a.e(f"s_and_b32 s{sCG}, s{sH}, 7")
        a.e(f"s_lshl_b32 s{sCG}, s{sCG}, 3")
        a.e(f"s_lshr_b32 s{sT0}, s{sH}, 3")
        a.e(f"s_lshl_b32 s{sT0}, s{sT0}, 1")
        a.e(f"s_add_u32 s{sCG}, s{sCG}, s{sT0}")
        a.e(f"s_add_u32 s{sCG}, s{sCG}, s{sS}")
    else:
        a.e(f"s_mov_b32 s{sCG}, s{sU}")
    a.c("epoch of this launch = (word left in the workspace) + 1: tells this launch's hand-offs from older ones")
    def epoch_addr():
        if opt.coop:
            a.e(f"s_mov_b32 s{sT0}, {WS_EPOCH}")
        else:
            a.e(f"s_lshl_b32 s{sT0}, s{sB}, 7")
            a.e(f"s_add_u32 s{sT0}, s{sT0}, {WS_EPOCH}")
    a.e(f"v_mov_b32 v{uT+4}, 0")
    epoch_addr()
    a.e(f"buffer_load_dword v{uEp}, v{uT+4}, {sr(sWS,4)}, s{sT0} offen sc1")
    a.e(f"v_mov_b32 v26, {LDS_FLAG}")
    a.e(f"v_mov_b32 v27, 0")
    a.e(f"ds_write_b32 v26, v27")
    if opt.coop:
        a.e(f"v_lshlrev_b32 v{uT+2}, 2, v{vLane}")
        a.e(f"s_lshl_b32 s{sT0}, s{sH}, 11")
        a.e(f"s_add_u32 s{sT0}, s{sT0}, {WS_QX}")
        a.e(f"s_lshl_b32 s{sT1}, s{sB}, 1")
        a.e(f"s_add_u32 s{sT1}, s{sT1}, s{sS}")
        a.e(f"s_lshl_b32 s{sT1}, s{sT1}, 8")
        a.e(f"s_add_u32 s{sT1}, s{sT1}, s{sT0}")
        a.e(f"v_lshrrev_b32 v{uT+5}, 3, v{vLane}")
        a.e(f"v_lshlrev_b32 v{uT+5}, 8, v{uT+5}")
        a.e(f"v_and_b32 v{uT+6}, 7, v{vLane}")
        a.e(f"v_lshl_add_u32 v{uT+5}, v{uT+6}, 3, v{uT+5}")
        a.e(f"s_lshl_b32 s{sT2}, s{sB}, 6")
        a.e(f"s_add_u32 s{sT2}, s{sT2}, s{sT0}")
        a.e("s_waitcnt vmcnt(0) lgkmcnt(0)")
        a.e(f"v_add_u32 v{uEp}, 1, v{uEp}")
        if opt.prio: a.e(f"s_setprio {opt.prio}")
        a.e("s_barrier")
        qstamp(1)
        a.c("sum the 8 partial q pieces (lane = batch*16 + column), publish them as {bf16 pair, epoch} granules")
        for x in range(8):
            a.e(f"ds_read_b32 v{uW+x}, v{uT+2} offset:{LDS_QP + x*256}")
        a.e("s_waitcnt lgkmcnt(0)")
        for x in (0, 2, 4, 6):
            a.e(f"v_add_f32 v{uW+x}, v{uW+x}, v{uW+x+1}")
        a.e(f"v_add_f32 v{uW}, v{uW}, v{uW+2}")
        a.e(f"v_add_f32 v{uW+4}, v{uW+4}, v{uW+6}")
        a.e(f"v_add_f32 v{uW}, v{uW}, v{uW+4}")
        a.e(f"v_lshlrev_b32 v{uT+3}, 2, v{vLane}")
        a.e("s_nop 0")
        a.e(f"v_mov_b32_dpp v{uW+1}, v{uW} quad_perm:[1,0,3,2] {FULL}")
        a.e(f"v_mov_b32 v{uW+3}, v{uEp}")
        a.e(f"v_cvt_pk_bf16_f32 v{uW+2}, v{uW}, v{uW+1}")
        a.e(f"s_mov_b32 s{sEX}, 0x55555555")
        a.e(f"s_mov_b32 s{sEX+1}, 0x55555555")
        a.e(f"s_mov_b64 exec, {sr(sEX,2)}")
        a.e(f"buffer_store_dwordx2 {vr(uW+2,2)}, v{uT+3}, {sr(sWS,4)}, s{sT1} offen sc1")
        a.e("s_mov_b64 exec, -1")
        qstamp(2)
        a.c("collect the 64 column pairs of this batch from the 8 workgroups of the head")
        a.e(f"s_mov_b32 s{sCNT}, {opt.spin}")
        a.label("L_q_poll")
        a.e(f"buffer_load_dwordx2 {vr(uW+4,2)}, v{uT+5}, {sr(sWS,4)}, s{sT2} offen sc1")
        a.e("s_waitcnt vmcnt(0)")
        if opt.qdbg:
            a.e(f"s_cmp_lg_u32 s{sCNT}, {opt.spin}")
            a.e("s_cbranch_scc1 L_q_nf")
            qstamp(3)
            a.label("L_q_nf")
        a.e(f"v_cmp_ne_u32 vcc, v{uW+5}, v{uEp}")
        a.e("s_nop 4")
        a.e("s_cbranch_vccz L_q_ok")
        a.e(f"s_sub_u32 s{sCNT}, s{sCNT}, 1")
        a.e(f"s_cmp_lg_u32 s{sCNT}, 0")
        a.e("s_cbranch_scc1 L_q_poll")
        a.label("L_q_ok")
        qstamp(4)
        a.e(f"ds_write_b32 v{uT+2}, v{uW+4} offset:{LDS_QF}")
        a.e("s_waitcnt lgkmcnt(0)")
        a.e("s_barrier")
    else:
        a.e("s_waitcnt lgkmcnt(0)")
        a.e("s_barrier")
        a.e("s_waitcnt vmcnt(0)")
        a.e(f"v_add_u32 v{uEp}, 1, v{uEp}")
    qstamp(5)
    if opt.prio: a.e("s_setprio 0")
    in_aux[0] = True
    stamp(1)
    if not opt.aux:
        a.e("s_barrier")
        if opt.stamps:
            srd(a, sWS, 22, None, f"0x{WS_SIZE:x}")
            for i in range(2, 10): stamp(i)
            dump_stamps(26, 28, vLane, 10)
        a.e("s_endpgm")
    a.c("clear this workgroup's y row and m/l with the 'not written' pattern")
    a.e(f"v_mov_b32 v{uT}, -1")
    a.e(f"v_mov_b32 v{uT+1}, -1")
    a.e(f"v_mov_b32 v{uT+2}, -1")
    a.e(f"v_mov_b32 v{uT+3}, -1")
    a.e(f"v_lshlrev_b32 v{uOff}, 4, v{vLane}")
    a.e(f"s_mul_i32 s{sT0}, s{sIDX}, {YROW}")
    if opt.axoff & 4: a.e(f"s_mov_b32 s{sWS+2}, 0")
    a.e(f"buffer_store_dwordx4 {vr(uT,4)}, v{uOff}, {sr(sWS,4)}, s{sT0} offen sc1")
    a.e(f"buffer_store_dwordx4 {vr(uT,4)}, v{uOff}, {sr(sWS,4)}, s{sT0} offen offset:1024 sc1")
    a.e(f"v_cmp_gt_u32 vcc, 8, v{vLane}")
    a.e(f"s_and_saveexec_b64 {sr(sEX,2)}, vcc")
    a.e(f"buffer_store_dwordx4 {vr(uT,4)}, v{uOff}, {sr(sWS,4)}, s{sT0} offen offset:2048 sc1")
    a.e(f"s_mov_b64 exec, {sr(sEX,2)}")
    a.c("FFN stage 1: 32 hidden units (8 per lane group c = lane&3), rows 32rr..32rr+31 with rr = lane>>2")
    a.e(f"s_min_u32 s{sT3}, s{sU}, 55")
    a.e(f"s_lshl_b32 s{sT0}, s{sT3}, 6")
    srd(a, sW1, 16, sT0, "0x1c0000")
    a.e(f"s_sub_u32 s{sW1+2}, s{sW1+2}, s{sT0}")
    a.e(f"s_lshl_b32 s{sT0}, s{sT3}, 15")
    srd(a, sW2, 20, sT0, "0x8000")
    a.e(f"s_cmp_ge_u32 s{sU}, 56")
    a.e(f"s_cselect_b32 s{sW1+2}, 0, s{sW1+2}")
    a.e(f"s_cselect_b32 s{sW2+2}, 0, s{sW2+2}")
    if opt.axoff & 1: a.e(f"s_mov_b32 s{sW1+2}, 0")
    if opt.axoff & 2: a.e(f"s_mov_b32 s{sW2+2}, 0")
    a.e(f"v_lshrrev_b32 v{uT}, 2, v{vLane}")
    a.e(f"v_lshlrev_b32 v{uT+1}, 6, v{uT}")
    a.e(f"s_lshl_b32 s{sT1}, s{sB}, 10")
    for x in range(4):
        a.vmem(f"buffer_load_dwordx4 {vr(uX+4*x,4)}, v{uT+1}, {sr(sX,4)}, s{sT1} offen offset:{16*x}", "xf")
    a.e(f"s_mov_b32 s{sT0}, {32*3584}")
    a.e(f"v_mul_lo_u32 v{uT+2}, s{sT0}, v{uT}")
    a.e(f"v_and_b32 v{uT+3}, 3, v{vLane}")
    a.e(f"v_lshl_add_u32 v{uT+2}, v{uT+3}, 4, v{uT+2}")
    for k in range(8):
        a.e(f"v_mov_b32 v{uAcc+k}, 0")
    WIN = opt.auxwin
    def ffn_stream(nload, mk_load, consume):
        issued_ = 0
        for p in range(nload // 2):
            while issued_ < min(nload, 2*p + 2 + WIN):
                a.vmem(mk_load(issued_), f"aux{issued_}")
                issued_ += 1
            a.wait_vm(f"aux{2*p+1}")
            consume(p)
    def w1_load(j):
        a.e(f"s_mov_b32 s{sT2}, {j*3584}")
        return f"buffer_load_dwordx4 {vr(uW+4*(j&15),4)}, v{uT+2}, {sr(sW1,4)}, s{sT2} offen{wpol}"
    def w1_use(p):
        j = (2*p) & 15
        for d in range(4):
            r0 = uW + 4*j + d; r1 = r0 + 4
            a.e(f"v_perm_b32 v{uT+4}, v{r1}, v{r0}, s{sPLO}")
            a.e(f"v_perm_b32 v{uT+5}, v{r1}, v{r0}, s{sPHI}")
            a.e(f"v_dot2c_f32_bf16 v{uAcc+2*d}, v{uT+4}, v{uX+p}")
            a.e(f"v_dot2c_f32_bf16 v{uAcc+2*d+1}, v{uT+5}, v{uX+p}")
    assert WIN + 2 <= 16
    ffn_stream(32, w1_load, w1_use)
    a.e("s_nop 2")
    reduce_scatter8(a, uAcc)
    a.e("s_nop 1")
    for k in range(2):
        a.e(f"v_add_f32_dpp v{uAcc+k}, v{uAcc+k}, v{uAcc+k} row_ror:8 {FULL}")
    a.e("s_nop 0")
    for k in range(2):
        a.e(f"v_add_f32_dpp v{uAcc+k}, v{uAcc+k}, v{uAcc+k} row_ror:4 {FULL}")
    a.c("lane (g, c): units 8c+2g, 8c+2g+1.  h = bf16(bf16(sum) + b1); h2 = bf16(relu(h)^2)")
    a.e(f"s_lshl_b32 s{sT0}, s{sT3}, 6")
    srd(a, sW1, 18, sT0, "64")
    a.e(f"v_lshrrev_b32 v{uT}, 4, v{vLane}")
    a.e(f"v_lshlrev_b32 v{uT}, 2, v{uT}")
    a.e(f"v_and_b32 v{uT+1}, 3, v{vLane}")
    a.e(f"v_lshl_add_u32 v{uT}, v{uT+1}, 4, v{uT}")
    a.vmem(f"buffer_load_dword v{uT+1}, v{uT}, {sr(sW1,4)}, 0 offen", "b1")
    a.e(f"v_cvt_pk_bf16_f32 v{uT+2}, v{uAcc}, v{uAcc+1}")
    a.e(f"v_lshlrev_b32 v{uAcc}, 16, v{uT+2}")
    a.e(f"v_and_b32 v{uAcc+1}, 0xffff0000, v{uT+2}")
    a.wait_vm("b1")
    a.e(f"v_lshlrev_b32 v{uT+2}, 16, v{uT+1}")
    a.e(f"v_and_b32 v{uT+3}, 0xffff0000, v{uT+1}")
    a.e(f"v_add_f32 v{uAcc}, v{uAcc}, v{uT+2}")
    a.e(f"v_add_f32 v{uAcc+1}, v{uAcc+1}, v{uT+3}")
    a.e(f"v_cvt_pk_bf16_f32 v{uT+2}, v{uAcc}, v{uAcc+1}")
    a.e(f"v_lshlrev_b32 v{uAcc}, 16, v{uT+2}")
    a.e(f"v_and_b32 v{uAcc+1}, 0xffff0000, v{uT+2}")
    a.e(f"v_max_f32 v{uAcc}, 0, v{uAcc}")
    a.e(f"v_max_f32 v{uAcc+1}, 0, v{uAcc+1}")
    a.e(f"v_mul_f32 v{uAcc}, v{uAcc}, v{uAcc}")
    a.e(f"v_mul_f32 v{uAcc+1}, v{uAcc+1}, v{uAcc+1}")
    a.e(f"v_cvt_pk_bf16_f32 v{uH2}, v{uAcc}, v{uAcc+1}")
    a.c("FFN stage 2: rows 32u..32u+31 of w2, lane = 8 columns")
    a.e(f"v_lshlrev_b32 v{uT+2}, 4, v{vLane}")
    for k in range(8):
        a.e(f"v_mov_b32 v{uAcc+k}, 0")
    def w2_load(j):
        a.e(f"s_mov_b32 s{sT2}, {(j>>2)*4096}")
        return f"buffer_load_dwordx4 {vr(uW+4*(j&15),4)}, v{uT+2}, {sr(sW2,4)}, s{sT2} offen offset:{(j&3)*1024}{wpol}"
    def w2_use(p):
        c_, g_ = p >> 2, p & 3
        a.e(f"v_readlane_b32 s{sT0}, v{uH2}, {16*g_ + c_}")
        j = (2*p) & 15
        for d in range(4):
            r0 = uW + 4*j + d; r1 = r0 + 4
            a.e(f"v_perm_b32 v{uT+4}, v{r1}, v{r0}, s{sPLO}")
            a.e(f"v_perm_b32 v{uT+5}, v{r1}, v{r0}, s{sPHI}")
            a.e(f"v_dot2c_f32_bf16 v{uAcc+2*d}, s{sT0}, v{uT+4}")
            a.e(f"v_dot2c_f32_bf16 v{uAcc+2*d+1}, s{sT0}, v{uT+5}")
    ffn_stream(32, w2_load, w2_use)
    a.e(f"s_lshl_b32 s{sT0}, s{sIDX}, 11")
    a.e(f"s_add_u32 s{sT1}, s{sT0}, {WS_Z}")
    a.e("s_nop 1")
    a.c("FFN partial row, stored as [half][lane][4]; once it and the cleared y row are acknowledged, raise the ready flag")
    a.e(f"buffer_store_dwordx4 {vr(uAcc,4)}, v{uOff}, {sr(sWS,4)}, s{sT1} offen sc1")
    a.e(f"buffer_store_dwordx4 {vr(uAcc+4,4)}, v{uOff}, {sr(sWS,4)}, s{sT1} offen offset:1024 sc1")
    a.e(f"s_lshl_b32 s{sT0}, s{sIDX}, 7")
    a.e(f"s_add_u32 s{sT0}, s{sT0}, {WS_FLAG}")
    a.e(f"v_mov_b32 v{uT+4}, 0")
    a.e("s_waitcnt vmcnt(0)")
    a.e(f"v_cmp_eq_u32 vcc, 0, v{vLane}")
    a.e(f"s_and_saveexec_b64 {sr(sEX,2)}, vcc")
    a.e(f"buffer_store_dword v{uEp}, v{uT+4}, {sr(sWS,4)}, s{sT0} offen sc1")
    a.e(f"s_mov_b64 exec, {sr(sEX,2)}")
    if opt.axoff & 4: a.e(f"s_mov_b32 s{sWS+2}, 0x{WS_SIZE:x}")
    stamp(2)
    a.c("gate: g = bf16(sigmoid(bf16(sum bf16(x*w))))")
    a.e(f"v_lshlrev_b32 v{uT}, 4, v{vLane}")
    srd(a, sW1, 10, None, "1024")
    a.e(f"s_lshl_b32 s{sT1}, s{sB}, 10")
    a.e(f"buffer_load_dwordx4 {vr(uW,4)}, v{uT}, {sr(sX,4)}, s{sT1} offen")
    a.e(f"buffer_load_dwordx4 {vr(uW+4,4)}, v{uT}, {sr(sW1,4)}, 0 offen")
    a.c("b2 of this lane's output column: column = 2g + (i >= 8)")
    a.e(f"s_lshl_b32 s{sT0}, s{sCG}, 4")
    srd(a, sW2, 8, sT0, "16")
    a.e(f"v_lshrrev_b32 v{uT+1}, 4, v{vLane}")
    a.e(f"v_lshlrev_b32 v{uT+1}, 2, v{uT+1}")
    a.e(f"v_bfe_u32 v{uT+2}, v{vLane}, 3, 1")
    a.e(f"v_lshl_add_u32 v{uNeg}, v{uT+2}, 1, v{uT+1}")
    a.e(f"buffer_load_ushort v{uB2}, v{uNeg}, {sr(sW2,4)}, 0 offen")
    a.e("s_waitcnt vmcnt(1)")
    a.e(f"v_mov_b32 v{uG}, 0")
    for d in range(4):
        a.e(f"v_lshlrev_b32 v{uT}, 16, v{uW+d}")
        a.e(f"v_and_b32 v{uT+1}, 0xffff0000, v{uW+d}")
        a.e(f"v_lshlrev_b32 v{uT+2}, 16, v{uW+4+d}")
        a.e(f"v_and_b32 v{uT+3}, 0xffff0000, v{uW+4+d}")
        a.e(f"v_mul_f32 v{uT}, v{uT}, v{uT+2}")
        a.e(f"v_mul_f32 v{uT+1}, v{uT+1}, v{uT+3}")
        a.e(f"v_cvt_pk_bf16_f32 v{uT}, v{uT}, v{uT+1}")
        a.e(f"v_lshlrev_b32 v{uT+1}, 16, v{uT}")
        a.e(f"v_and_b32 v{uT}, 0xffff0000, v{uT}")
        a.e(f"v_add_f32 v{uG}, v{uG}, v{uT+1}")
        a.e(f"v_add_f32 v{uG}, v{uG}, v{uT}")
    def dpp_allred16(reg):
        for m in ("quad_perm:[1,0,3,2]", "quad_perm:[2,3,0,1]", "row_ror:4", "row_ror:8"):
            a.e("s_nop 1")
            a.e(f"v_add_f32_dpp v{reg}, v{reg}, v{reg} {m} {FULL}")
    dpp_allred16(uG)
    allred_rows(a, uG, uT, uT+1, "v_add_f32")
    def rbf(reg):
        a.e(f"v_cvt_pk_bf16_f32 v{reg}, v{reg}, v{reg}")
        a.e(f"v_lshlrev_b32 v{reg}, 16, v{reg}")
    rbf(uG)
    a.e(f"v_mul_f32 v{uG}, 0xbfb8aa3b, v{uG}")
    a.e(f"v_exp_f32 v{uG}, v{uG}")
    a.e("s_nop 0")
    a.e(f"v_add_f32 v{uG}, 1.0, v{uG}")
    a.e(f"v_rcp_f32 v{uG}, v{uG}")
    a.e("s_nop 0")
    rbf(uG)
    a.e(f"v_sub_f32 v{uG1}, 1.0, v{uG}")
    rbf(uG1)
    a.c("idle until the streaming waves are half way")
    a.e(f"s_mov_b32 s{sCNT}, {opt.spin}")
    a.e(f"v_mov_b32 v{uT+4}, {LDS_FLAG}")
    a.label("L_flag_poll")
    a.e(f"ds_read_b32 v{uT}, v{uT+4}")
    a.e("s_waitcnt lgkmcnt(0)")
    a.e(f"v_readfirstlane_b32 s{sT0}, v{uT}")
    a.e(f"s_cmp_eq_u32 s{sT0}, 1")
    a.e("s_cbranch_scc1 L_flag_ok")
    a.e("s_sleep 64")
    a.e(f"s_sub_u32 s{sCNT}, s{sCNT}, 1")
    a.e(f"s_cmp_lg_u32 s{sCNT}, 0")
    a.e("s_cbranch_scc1 L_flag_poll")
    a.label("L_flag_ok")
    a.c("wait for the ready flags of the 64 workgroups of this batch (lane = workgroup)")
    a.e(f"s_mov_b32 s{sCNT}, {opt.spin}")
    a.e(f"s_lshl_b32 s{sT1}, s{sB}, 13")
    a.e(f"s_add_u32 s{sT1}, s{sT1}, {WS_FLAG}")
    a.e(f"v_lshlrev_b32 v{uT+4}, 7, v{vLane}")
    a.label("L_rdy_poll")
    a.e(f"buffer_load_dword v{uT}, v{uT+4}, {sr(sWS,4)}, s{sT1} offen sc1")
    a.e("s_waitcnt vmcnt(0)")
    a.e(f"v_cmp_ne_u32 vcc, v{uT}, v{uEp}")
    a.e("s_nop 4")
    a.e("s_cbranch_vccz L_rdy_ok")
    a.e("s_sleep 32")
    a.e(f"s_sub_u32 s{sCNT}, s{sCNT}, 1")
    a.e(f"s_cmp_lg_u32 s{sCNT}, 0")
    a.e("s_cbranch_scc1 L_rdy_poll")
    a.label("L_rdy_ok")
    def reduce64_8(base):
        reduce_scatter8(a, base)
        a.e("s_nop 1")
        a.e(f"v_add_f32_dpp v{base}, v{base}, v{base} row_ror:8 row_mask:0xf bank_mask:0x3")
        a.e(f"v_add_f32_dpp v{base}, v{base+1}, v{base+1} row_ror:8 row_mask:0xf bank_mask:0xc")
        for m in ("row_half_mirror", "quad_perm:[1,0,3,2]", "quad_perm:[2,3,0,1]"):
            a.e("s_nop 1")
            a.e(f"v_add_f32_dpp v{base}, v{base}, v{base} {m} {FULL}")
    def poll(label, srd_, regs, loads, sleep):
        a.e(f"s_mov_b32 s{sCNT}, {1 if opt.axoff & 8 else opt.spin}")
        a.label(label)
        for l in loads:
            a.e(l)
        a.e("s_waitcnt vmcnt(0)")
        a.e(f"v_max3_u32 v{uT}, v{regs[0]}, v{regs[1]}, v{regs[2]}")
        rest = regs[3:]
        while rest:
            if len(rest) >= 2:
                a.e(f"v_max3_u32 v{uT}, v{uT}, v{rest[0]}, v{rest[1]}"); rest = rest[2:]
            else:
                a.e(f"v_max_u32 v{uT}, v{uT}, v{rest[0]}"); rest = rest[1:]
        a.e(f"v_cmp_eq_u32 vcc, -1, v{uT}")
        a.e("s_nop 4")
        a.e(f"s_cbranch_vccz {label}_ok")
        if sleep: a.e(f"s_sleep {sleep}")
        a.e(f"s_sub_u32 s{sCNT}, s{sCNT}, 1")
        a.e(f"s_cmp_lg_u32 s{sCNT}, 0")
        a.e(f"s_cbranch_scc1 {label}")
        a.label(label + "_ok")
    a.c("gather the FFN partial rows of this batch: lane = row, 8 columns of group u")
    a.e(f"s_lshl_b32 s{sT0}, s{sB}, 17")
    a.e(f"s_lshl_b32 s{sT1}, s{sCG}, 4")
    a.e(f"s_add_u32 s{sT2}, s{sT0}, s{sT1}")
    a.e(f"s_add_u32 s{sT2}, s{sT2}, {WS_Z}")
    srd(a, sW1, 22, sT2, f"{56*2048}")
    a.e(f"s_sub_u32 s{sW1+2}, s{sW1+2}, s{sT1}")
    a.e(f"s_mul_i32 s{sT0}, s{sB}, {64*YROW}")
    srd(a, sW2, 22, sT0, f"{64*YROW}")
    a.e(f"v_lshlrev_b32 v{uOff}, 11, v{vLane}")
    a.e(f"buffer_load_dwordx4 {vr(uZ,4)}, v{uOff}, {sr(sW1,4)}, 0 offen sc1")
    a.e(f"buffer_load_dwordx4 {vr(uZ+4,4)}, v{uOff}, {sr(sW1,4)}, 0 offen offset:1024 sc1")
    a.e("s_waitcnt vmcnt(0)")
    reduce64_8(uZ)
    rbf(uZ)
    a.e(f"v_lshlrev_b32 v{uB2}, 16, v{uB2}")
    a.e(f"v_add_f32 v{uZ}, v{uZ}, v{uB2}")
    rbf(uZ)
    a.e(f"v_mul_f32 v{uG1}, v{uG1}, v{uZ}")
    rbf(uG1)
    a.e(f"s_lshl_b32 s{sT0}, s{sB}, 10")
    a.e(f"s_lshl_b32 s{sT1}, s{sCG}, 4")
    a.e(f"s_add_u32 s{sT0}, s{sT0}, s{sT1}")
    srd(a, sOUT, 12, sT0, "16")
    if opt.otouch:
        a.c("translate the output page ahead of the final store (the value read is not used)")
        a.e(f"buffer_load_ushort v{132}, v{uNeg}, {sr(sOUT,4)}, 0 offen")
    a.e(f"s_mov_b32 s{sT0}, {YROW}")
    a.e(f"v_mul_lo_u32 v{uT+6}, s{sT0}, v{vLane}")
    a.e(f"s_lshl_b32 s{sT3}, s{sCG}, 5")
    stamp(3)
    a.e("s_barrier")
    stamp(4)
    a.c("wait for the m/l pairs of this batch (4 lines), then gather the attention partial rows")
    yv = uW
    if opt.mlpoll:
        poll("L_ml_poll", sW2, [yv+8, yv+9, yv+9],
             [f"buffer_load_dwordx2 {vr(yv+8,2)}, v{uT+6}, {sr(sW2,4)}, 0 offen offset:2048 sc1"], opt.ysleep)
    a.c("lanes whose row has arrived drop out of the poll; poll fast only when few rows are missing")
    a.e(f"s_mov_b32 s{sCNT}, {opt.spin}")
    a.label("L_y_poll")
    a.e(f"buffer_load_dwordx4 {vr(yv,4)}, v{uT+6}, {sr(sW2,4)}, s{sT3} offen sc1")
    a.e(f"buffer_load_dwordx4 {vr(yv+4,4)}, v{uT+6}, {sr(sW2,4)}, s{sT3} offen offset:16 sc1")
    a.e(f"buffer_load_dwordx2 {vr(yv+8,2)}, v{uT+6}, {sr(sW2,4)}, 0 offen offset:2048 sc1")
    a.e("s_waitcnt vmcnt(0)")
    a.e(f"v_max3_u32 v{uT}, v{yv}, v{yv+1}, v{yv+2}")
    a.e(f"v_max3_u32 v{uT+1}, v{yv+3}, v{yv+4}, v{yv+5}")
    a.e(f"v_max3_u32 v{uT}, v{uT}, v{yv+6}, v{yv+7}")
    a.e(f"v_max3_u32 v{uT+1}, v{uT+1}, v{yv+8}, v{yv+9}")
    a.e(f"v_max_u32 v{uT}, v{uT}, v{uT+1}")
    a.e(f"v_cmp_eq_u32 vcc, -1, v{uT}")
    a.e("s_nop 1")
    a.e("s_and_b64 exec, exec, vcc")
    a.e("s_cbranch_execz L_y_poll_ok")
    a.e(f"s_bcnt1_i32_b64 s{sT0}, exec")
    a.e(f"s_cmp_le_u32 s{sT0}, {opt.yfast}")
    a.e("s_cbranch_scc1 L_y_fast")
    a.e(f"s_sleep {opt.yslow}")
    a.label("L_y_fast")
    if opt.ysleep: a.e(f"s_sleep {opt.ysleep}")
    a.e(f"s_sub_u32 s{sCNT}, s{sCNT}, 1")
    a.e(f"s_cmp_lg_u32 s{sCNT}, 0")
    a.e("s_cbranch_scc1 L_y_poll")
    a.label("L_y_poll_ok")
    a.e("s_mov_b64 exec, -1")
    stamp(5)
    m_, l_ = yv+8, yv+9
    a.e(f"v_mov_b32_dpp v{uT}, v{m_} quad_perm:[1,0,3,2] {FULL}")
    a.e(f"v_mov_b32_dpp v{uT+1}, v{l_} quad_perm:[1,0,3,2] {FULL}")
    a.e(f"v_max_f32 v{uT+2}, v{m_}, v{uT}")
    a.e(f"v_sub_f32 v{uT+3}, v{m_}, v{uT+2}")
    a.e(f"v_sub_f32 v{uT}, v{uT}, v{uT+2}")
    a.e(f"v_exp_f32 v{uT+3}, v{uT+3}")
    a.e(f"v_exp_f32 v{uT}, v{uT}")
    a.e("s_nop 0")
    a.e(f"v_mul_f32 v{uT+2}, v{uT+3}, v{l_}")
    a.e(f"v_fma_f32 v{uT+2}, v{uT}, v{uT+1}, v{uT+2}")
    a.e(f"v_rcp_f32 v{uT+2}, v{uT+2}")
    a.e("s_nop 0")
    a.e(f"v_mul_f32 v{uT+2}, v{uT+2}, v{uT+3}")
    for k in range(8):
        a.e(f"v_mul_f32 v{yv+k}, v{uT+2}, v{yv+k}")
    a.e("s_nop 1")
    reduce64_8(yv)
    rbf(yv)
    a.e(f"v_mul_f32 v{yv}, v{uG}, v{yv}")
    rbf(yv)
    a.e(f"v_add_f32 v{yv}, v{yv}, v{uG1}")
    a.e(f"v_cvt_pk_bf16_f32 v{yv}, v{yv}, v{yv}")
    a.e(f"v_and_b32 v{uT}, 7, v{vLane}")
    a.e(f"v_cmp_eq_u32 vcc, 0, v{uT}")
    a.e(f"s_and_saveexec_b64 {sr(sEX,2)}, vcc")
    a.e(f"buffer_store_short v{yv}, v{uNeg}, {sr(sOUT,4)}, 0 offen")
    a.c("every workgroup this result depends on has read the epoch word: leave the new value for the next launch")
    a.e(f"s_cmp_lg_u32 s{sIDX if opt.coop else sU}, 0")
    a.e("s_cbranch_scc1 L_no_epoch")
    epoch_addr()
    a.e(f"v_mov_b32 v{uT+4}, 0")
    a.e(f"buffer_store_dword v{uEp}, v{uT+4}, {sr(sWS,4)}, s{sT0} offen sc1")
    a.label("L_no_epoch")
    if opt.stamps:
        a.e(f"s_mov_b64 exec, {sr(sEX,2)}")
        stamp(6)
        a.e("s_waitcnt vmcnt(0)")
        for i in (7, 8, 9): stamp(i)
        dump_stamps(uT, uT+2, vLane, 10)
    a.label("L_end")
    a.e("s_endpgm")
    a.label("L_code_end")

    out = HEADER
    out += f"; @launch grid=(256,1,1) block=(576,1,1) lds={LDS_SIZE}\n"
    out += '.amdgcn_target "amdgcn-amd-amdhsa--gfx950"\n.text\n' + a.text()
    out += f""".section .rodata,"a"
.p2align 6
.amdhsa_kernel {K1}
  .amdhsa_next_free_vgpr {NV}
  .amdhsa_next_free_sgpr 102
  .amdhsa_accum_offset {NV}
  .amdhsa_group_segment_fixed_size 0
  .amdhsa_kernarg_size 112
  .amdhsa_user_sgpr_count 2
  .amdhsa_user_sgpr_kernarg_segment_ptr 1
  .amdhsa_system_sgpr_workgroup_id_x 1
  .amdhsa_float_denorm_mode_32 3
.end_amdhsa_kernel
"""
    return out

def main():
    ap = argparse.ArgumentParser()
    ap.add_argument("-o", default="-")
    ap.add_argument("--policy", default="nt")
    ap.add_argument("--wpolicy", default="")
    ap.add_argument("--stamps", action="store_true")
    ap.add_argument("--la", type=float, default=3)
    ap.add_argument("--p0", type=int, default=16)
    ap.add_argument("--rot", type=int, default=1)
    ap.add_argument("--wo", type=int, default=1)
    ap.add_argument("--q", type=int, default=1)
    ap.add_argument("--aux", type=int, default=1)
    ap.add_argument("--nocomp", type=int, default=0)
    ap.add_argument("--map", default="hs")
    ap.add_argument("--pa", type=int, default=4)
    ap.add_argument("--pb", type=int, default=16)
    ap.add_argument("--ilv", type=int, default=2)
    ap.add_argument("--axoff", type=int, default=0)
    ap.add_argument("--pf", type=int, default=0)
    ap.add_argument("--qdbg", type=int, default=0)
    ap.add_argument("--prio", type=int, default=0)
    ap.add_argument("--coop", type=int, default=0)
    ap.add_argument("--ext", type=int, default=0)
    ap.add_argument("--wot", type=int, default=0)
    ap.add_argument("--yfast", type=int, default=8)
    ap.add_argument("--yslow", type=int, default=24)
    ap.add_argument("--lasched", default="")
    ap.add_argument("--pace", type=int, default=0)
    ap.add_argument("--cgmap", type=int, default=1)
    ap.add_argument("--touch", type=int, default=0)
    ap.add_argument("--tprio", type=int, default=3)
    ap.add_argument("--preext", type=int, default=0)
    ap.add_argument("--otouch", type=int, default=1)
    ap.add_argument("--auxwin", type=int, default=2)
    ap.add_argument("--spin", type=int, default=200000)
    ap.add_argument("--ysleep", type=int, default=1)
    ap.add_argument("--ztile", type=int, default=8)
    ap.add_argument("--mlpoll", type=int, default=0)
    opt = ap.parse_args()
    out = gen(opt)
    if opt.o == "-": sys.stdout.write(out)
    else: open(opt.o, "w").write(out)

if __name__ == "__main__":
    main()
```
